```python
import torch

def _softmax(x, axis=-1):
    return torch.softmax(x, dim=axis)
def _gelu(x):
    return torch.nn.functional.gelu(x, approximate="tanh")
def _silu(x):
    return torch.nn.functional.silu(x)
def _sigmoid(x):
    return torch.sigmoid(x)
def _layernorm(x, axis=-1, eps=1e-5):
    m = x.mean(dim=axis, keepdim=True)
    v = x.var(dim=axis, keepdim=True, unbiased=False)
    return (x - m) / torch.sqrt(v + eps)
def _scatter_add(tgt, idx, src, axis=0):
    return tgt.clone().index_add_(axis, idx, src)
def _segment_sum(src, seg, n):
    out = torch.zeros((n,) + src.shape[1:], dtype=src.dtype)
    return out.index_add_(0, seg, src)
def _pad(x, pw):
    flat = tuple(v for pair in reversed(pw) for v in pair)
    return torch.nn.functional.pad(x, flat)

kernel_name = 'recurrent_scan__mha_block_cached__dense_activation_silu__prompt'

def setup_inputs():

    _w = (lambda a: (lambda t: t.to(torch.bfloat16) if t.is_floating_point() else t)(torch.as_tensor(a)))
    def _A_setup():
        B, Sq, D = 1, 2048, 512
        H, Sk, Dh = 32, 2048, 128
        return {
            "x": _w((lambda *s: torch.randn(*s, dtype=torch.bfloat16) * 0.05)(B, Sq, D)),
            "k_cache": _w((lambda *s: torch.randn(*s, dtype=torch.bfloat16) * 3.2)(B, H, Sk, Dh)),
            "v_cache": _w((lambda *s: torch.randn(*s, dtype=torch.bfloat16) * 3.2)(B, H, Sk, Dh)),
            "wq": _w((lambda *s: torch.randn(*s, dtype=torch.bfloat16) * 3.2)(D, H * Dh) * (D ** -0.5)),
            "wo": _w((lambda *s: torch.randn(*s, dtype=torch.bfloat16) * 3.2)(H * Dh, D) * ((H * Dh) ** -0.5)),
        }
    _A_in = _A_setup()

    def _B_setup():
        B, S, D, F = 1, 2048, 512, 1792
        return {
            "x": _w((lambda *s: torch.randn(*s, dtype=torch.bfloat16) * 0.05)(B, S, D)),
            "w1": _w((lambda *s: torch.randn(*s, dtype=torch.bfloat16) * 3.2)(D, F) * (D ** -0.5)),
            "w2": _w((lambda *s: torch.randn(*s, dtype=torch.bfloat16) * 0.4)(F, D) * (F ** -0.5)),
        }
    _B_in = _B_setup()

    return {
        "A_x": _A_in["x"],
        "A_k_cache": _A_in["k_cache"],
        "A_v_cache": _A_in["v_cache"],
        "A_wq": _A_in["wq"],
        "A_wo": _A_in["wo"],
        "B_x": _B_in["x"],
        "B_w1": _B_in["w1"],
        "B_w2": _B_in["w2"],
    }

def reference(A_x, A_k_cache, A_v_cache, A_wq, A_wo, B_x, B_w1, B_w2):
    def _A_ref(x, k_cache, v_cache, wq, wo):
        B, Sq, D = x.shape
        H, Dh = 32, 128
        q = (lambda x, *d: x.permute(*d))((x @ wq).reshape(B, Sq, H, Dh), 0, 2, 1, 3)
        scores = torch.einsum("bhqd,bhkd->bhqk", q, k_cache) * (Dh ** -0.5)
        p = _softmax(scores, axis=-1)
        o = torch.einsum("bhqk,bhkd->bhqd", p, v_cache)
        return (lambda x, *d: x.permute(*d))(o, 0, 2, 1, 3).reshape(B, Sq, H * Dh) @ wo

    def _B_ref(x, w1, w2):
        h = torch.einsum("bsd,df->bsf", x, w1)
        h = _silu(h)
        out = torch.einsum("bsf,fd->bsd", h, w2)
        return out

    x = A_x
    xn = _layernorm(x, axis=-1)
    s = _A_ref(xn, A_k_cache, A_v_cache, A_wq, A_wo)
    g = _silu(_B_ref(xn, B_w1, B_w2))
    return x + s * g
```

```python
import sys
sys.path.insert(0, "lib")
from gen import *
KN = "recurrent_scan__mha_block_cached__dense_activation_silu__prompt_kernel"
WS_XN = 0x0
XN_BYTES = 128*16*1024
WS_H = 0x200000
H_BYTES = 128*56*1024
WS_O = 0x1000000
O_BYTES = 128*128*1024
WS_DBG = 0x2000000

class VM:
    def __init__(self, A): self.A = A; self.ops = []; self.done = 0
    def issue(self, text, label, tag=None):
        self.ops.append(label);
        assert len(self.ops) - self.done <= 63, "vmcnt overflow at %s" % text
        return self.A.i(text, tag)
    def outstanding(self): return len(self.ops) - self.done
    def count_for(self, pred):
        last = -1
        for k in range(len(self.ops)-1, self.done-1, -1):
            if pred(self.ops[k]): last = k; break
        if last < 0: return None
        return len(self.ops) - 1 - last
    def wait(self, pred, extra=""):
        n = self.count_for(pred)
        if n is None:
            if extra: self.A("s_waitcnt " + extra)
            return
        self.done = len(self.ops) - n
        self.A("s_waitcnt vmcnt(%d)%s" % (n, (" " + extra) if extra else ""))
    def wait_all(self, extra=""):
        self.done = len(self.ops)
        self.A("s_waitcnt vmcnt(0)" + ((" " + extra) if extra else ""))

def srd(A, q, lo, hi, nbytes, off=None):
    if off is None:
        A("s_mov_b32 s%d, s%d" % (q, lo)); A("s_mov_b32 s%d, s%d" % (q+1, hi))
    else:
        A("s_add_u32 s%d, s%d, %s" % (q, lo, off)); A("s_addc_u32 s%d, s%d, 0" % (q+1, hi))
    if isinstance(nbytes, int): A("s_mov_b32 s%d, 0x%x" % (q+2, nbytes))
    else: A(nbytes % (q+2))
    A("s_mov_b32 s%d, 0x00020000" % (q+3))

def f32bits(x):
    import struct
    return struct.unpack("<I", struct.pack("<f", x))[0]
def lit(x): return "0x%08x" % f32bits(x)

def finalize(code, verbose=True, name=""):
    fixed, probs = check_hazards(code, fix=True)
    if verbose and probs:
        print("[%s] inserted nops for %d hazards" % (name, len(probs)))
        for p in probs[:40]: print("   ", p)
    B = Asm(); B.code = fixed
    return B
```

```python
from common import *
def gen_k0(name="ln_kernel"):
    A = Asm()
    A.lines("""
s_cmp_ge_u32 s2, 256
s_cbranch_scc1 L0_end
s_load_dwordx2 s[4:5], s[0:1], 0
s_load_dwordx2 s[6:7], s[0:1], 80
v_and_b32 v1, 1, v0
v_lshrrev_b32 v2, 6, v0
v_and_b32 v3, 63, v0
v_lshrrev_b32 v3, 1, v3
s_lshl_b32 s3, s2, 3
v_lshl_add_u32 v4, v2, 1, v1
v_add_u32 v4, s3, v4
v_lshlrev_b32 v5, 10, v4
v_lshl_add_u32 v5, v3, 4, v5
s_waitcnt lgkmcnt(0)
""")
    srd(A, 8, 4, 5, 2048*1024)
    srd(A, 12, 6, 7, XN_BYTES)
    A("buffer_load_dwordx4 v[8:11], v5, s[8:11], 0 offen")
    A("buffer_load_dwordx4 v[12:15], v5, s[8:11], 0 offen offset:512")
    A.lines("""
v_lshrrev_b32 v6, 4, v4
v_lshlrev_b32 v6, 14, v6
v_lshrrev_b32 v7, 2, v3
v_lshl_add_u32 v6, v7, 10, v6
v_and_b32 v7, 3, v3
v_lshl_add_u32 v6, v7, 8, v6
v_and_b32 v7, 15, v4
v_lshl_add_u32 v6, v7, 4, v6
s_waitcnt vmcnt(0)
""")
    X = 16
    for i in range(8):
        A("v_lshlrev_b32 v%d, 16, v%d" % (X+2*i, 8+i))
        A("v_and_b32 v%d, 0xffff0000, v%d" % (X+2*i+1, 8+i))
    for i in range(8): A("v_add_f32 v%d, v%d, v%d" % (32+i, X+i, X+8+i))
    for i in range(4): A("v_add_f32 v%d, v%d, v%d" % (32+i, 32+i, 36+i))
    for i in range(2): A("v_add_f32 v%d, v%d, v%d" % (32+i, 32+i, 34+i))
    A("v_add_f32 v32, v32, v33")
    def allreduce(r, t):
        for k in (2, 4, 8):
            A("v_add_f32_dpp v%d, v%d, v%d row_ror:%d row_mask:0xf bank_mask:0xf" % (r, r, r, k))
        A("v_mov_b32 v%d, v%d" % (t, r))
        A("v_permlane16_swap_b32 v%d, v%d" % (r, t))
        A("v_add_f32 v%d, v%d, v%d" % (r, r, t))
        A("v_mov_b32 v%d, v%d" % (t, r))
        A("v_permlane32_swap_b32 v%d, v%d" % (r, t))
        A("v_add_f32 v%d, v%d, v%d" % (r, r, t))
    allreduce(32, 33)
    A("v_mul_f32 v40, %s, v32" % lit(1.0/512))
    A("v_cvt_pk_bf16_f32 v41, v40, v40")
    A("v_and_b32 v41, 0xffff0000, v41")
    for i in range(16): A("v_sub_f32 v%d, v%d, v40" % (44+i, X+i))
    A("v_mul_f32 v32, v44, v44")
    A("v_mul_f32 v33, v45, v45")
    for i in range(2, 16): A("v_fmac_f32 v%d, v%d, v%d" % (32+(i & 1), 44+i, 44+i))
    A("v_add_f32 v32, v32, v33")
    allreduce(32, 33)
    A.lines("""
v_mul_f32 v32, %s, v32
v_cvt_pk_bf16_f32 v32, v32, v32
v_and_b32 v32, 0xffff0000, v32
v_add_f32 v32, %s, v32
v_cvt_pk_bf16_f32 v32, v32, v32
v_and_b32 v32, 0xffff0000, v32
v_sqrt_f32 v32, v32
s_nop 0
v_cvt_pk_bf16_f32 v32, v32, v32
v_and_b32 v32, 0xffff0000, v32
v_rcp_f32 v33, v32
""" % (lit(1.0/512), lit(1e-5)))
    for i in range(16): A("v_sub_f32 v%d, v%d, v41" % (44+i, X+i))
    for i in range(8): A("v_cvt_pk_bf16_f32 v%d, v%d, v%d" % (8+i, 44+2*i, 45+2*i))
    for i in range(8):
        A("v_lshlrev_b32 v%d, 16, v%d" % (44+2*i, 8+i))
        A("v_and_b32 v%d, 0xffff0000, v%d" % (45+2*i, 8+i))
    for i in range(16): A("v_mul_f32 v%d, v%d, v33" % (X+i, 44+i))
    for i in range(16): A("v_fma_f32 v%d, -v%d, v32, v%d" % (44+i, X+i, 44+i))
    for i in range(16): A("v_fmac_f32 v%d, v%d, v33" % (X+i, 44+i))
    for i in range(8): A("v_cvt_pk_bf16_f32 v%d, v%d, v%d" % (8+i, X+2*i, X+2*i+1))
    A("s_movk_i32 s3, 0x2000")
    A("buffer_store_dwordx4 v[8:11], v6, s[12:15], 0 offen")
    A("buffer_store_dwordx4 v[12:15], v6, s[12:15], s3 offen")
    A.label("L0_end")
    A("s_endpgm")
    B = finalize(A.code, name="k0")
    return kernel_head(name) + B.text() + kernel_block(name, 64, 64, sgprs=32)
if __name__ == "__main__":
    print(gen_k0())
```

```python
from common import *
import math
sK, sV, sWQ, sW1, sXN, sH, sO = 8, 12, 16, 20, 24, 28, 32
sHEAD, sQT, sW, sW2K, sW1K = 42, 43, 44, 45, 46
sKo, sVo, sCNT, sFLAG, sT0, sT1, sT2 = 47, 48, 49, 50, 51, 52, 53
sHOFF, sOOFF = 54, 55
vQ = 0
vS = 64
vP = 128
vNM = 160
vL = 176
vKr = 180
vVr = 184
vKd = 192
vVd = 194
vWr = 196
vWrF = 200
vWdQ = 204; vWdF = 205
vX = 206
vLane = 210
vT = 212
vACC = vS
vWf = vP
aO = 0; aK = 128; aV = 160
LDS_K = 0; LDS_V = 65536; LDS_C = 131072
QSCALE = math.log2(math.e) / math.sqrt(128.0)

def mfma(d, a_, b_, c): return "v_mfma_f32_16x16x32_bf16 %s, %s, %s, %s" % (d, a_, b_, c)

class K2:
    def __init__(self, dbg=None, name="attn_kernel"):
        self.A = Asm(); self.vm = VM(self.A); self.dbg = dbg; self.name = name
    def setup(self):
        A = self.A
        A.lines("""
s_cmp_ge_u32 s2, 256
s_cbranch_scc1 L2_end
s_load_dwordx4 s[4:7], s[0:1], 8
s_load_dwordx2 s[36:37], s[0:1], 24
s_load_dwordx2 s[38:39], s[0:1], 48
s_load_dwordx2 s[40:41], s[0:1], 80
v_lshrrev_b32 v%(t0)d, 6, v0
v_and_b32 v%(t1)d, 63, v0
s_and_b32 s%(head)d, s2, 7
s_lshl_b32 s%(head)d, s%(head)d, 2
s_lshr_b32 s3, s2, 3
s_and_b32 s3, s3, 3
s_add_u32 s%(head)d, s%(head)d, s3
s_lshr_b32 s%(qt)d, s2, 5
v_readfirstlane_b32 s%(w)d, v%(t0)d
""" % dict(t0=vT, t1=vT+1, head=sHEAD, qt=sQT, w=sW))
        ln = vT+1; g = vT+2; c = vT+3; r = vT+4; cc = vT+5; t = vT+6; u = vT+7; x = vT+8
        A("v_lshrrev_b32 v%d, 4, v%d" % (g, ln))
        A("v_and_b32 v%d, 15, v%d" % (c, ln))
        A("v_lshrrev_b32 v%d, 2, v%d" % (r, c))
        A("v_and_b32 v%d, 3, v%d" % (cc, ln))
        A("v_lshlrev_b32 v%d, 4, v%d" % (vLane, ln))
        A("s_lshl_b32 s%d, s%d, 11" % (sW2K, sW))
        A("s_lshl_b32 s%d, s%d, 10" % (sW1K, sW))
        for ks in range(4):
            A("v_add_u32 v%d, %d, v%d" % (t, 4*ks, g))
            A("v_xor_b32 v%d, v%d, v%d" % (t, t, c))
            A("v_lshlrev_b32 v%d, 4, v%d" % (t, t))
            A("v_lshl_add_u32 v%d, v%d, 8, v%d" % (vKr+ks, c, t))
        A("v_lshl_add_u32 v%d, v%d, 2, v%d" % (u, g, r))
        A("v_and_b32 v%d, 7, v%d" % (x, u))
        A("v_lshlrev_b32 v%d, 8, v%d" % (u, u))
        A("v_lshl_add_u32 v%d, v%d, 3, v%d" % (u, cc, u))
        A("v_add_u32 v%d, 0x%x, v%d" % (u, LDS_V, u))
        for dt in range(8):
            A("v_xor_b32 v%d, %d, v%d" % (t, dt, x))
            A("v_lshl_add_u32 v%d, v%d, 5, v%d" % (vVr+dt, t, u))
        A("v_mov_b32 v%d, s%d" % (u, sW))
        A("v_lshl_add_u32 v%d, v%d, 3, v%d" % (u, u, g))
        for p in range(2):
            A("v_add_u32 v%d, %d, v%d" % (t, 4*p, u))
            A("v_and_b32 v%d, 15, v%d" % (t, t))
            A("v_xor_b32 v%d, v%d, v%d" % (t, t, c))
            A("v_lshlrev_b32 v%d, 4, v%d" % (t, t))
            A("v_lshl_add_u32 v%d, v%d, 8, v%d" % (vKd+p, u, t))
            A("v_add_u32 v%d, %d, v%d" % (t, 4*p, g))
            A("v_lshlrev_b32 v%d, 1, v%d" % (t, t))
            A("v_xor_b32 v%d, v%d, v%d" % (t, t, c))
            A("v_lshlrev_b32 v%d, 4, v%d" % (t, t))
            A("v_lshl_add_u32 v%d, v%d, 8, v%d" % (vVd+p, u, t))
        A("v_lshrrev_b32 v%d, 1, v%d" % (t, r))
        A("v_and_b32 v%d, 1, v%d" % (x, g))
        A("v_lshl_add_u32 v%d, v%d, 1, v%d" % (x, x, t))
        A("v_lshlrev_b32 v%d, 1, v%d" % (x, x))
        A("v_lshl_add_u32 v%d, v%d, 3, v%d" % (u, g, r))
        A("v_lshlrev_b32 v%d, 7, v%d" % (u, u))
        for tau in range(4):
            ksl, tt = tau >> 1, tau & 1
            A("v_add_u32 v%d, %d, v%d" % (t, 4*ksl, cc))
            A("v_xor_b32 v%d, v%d, v%d" % (t, t, x))
            A("v_lshl_add_u32 v%d, v%d, 4, v%d" % (t, t, u))
            A("v_add_u32 v%d, %d, v%d" % (vWr+tau, 8*tt, t))
        s1 = vT+9
        for tau in range(4):
            A("v_lshrrev_b32 v%d, 1, v%d" % (t, cc))
            A("v_add_u32 v%d, %d, v%d" % (t, 2*tau, t))
            A("v_xor_b32 v%d, v%d, v%d" % (t, t, x))
            A("v_lshl_add_u32 v%d, v%d, 4, v%d" % (t, t, u))
            A("v_and_b32 v%d, 1, v%d" % (s1, cc))
            A("v_lshl_add_u32 v%d, v%d, 3, v%d" % (t, s1, t))
            A("v_add_u32 v%d, 0x%x, v%d" % (vWrF+tau, LDS_C, t))
        A("v_lshrrev_b32 v%d, 3, v%d" % (u, ln))
        A("s_and_b32 s3, s%d, 1" % sW)
        A("s_lshl_b32 s3, s3, 1")
        A("v_and_b32 v%d, 1, v%d" % (x, g))
        A("v_or_b32 v%d, s3, v%d" % (x, x))
        A("v_lshlrev_b32 v%d, 1, v%d" % (x, x))
        A("v_and_b32 v%d, 7, v%d" % (t, ln))
        A("v_xor_b32 v%d, v%d, v%d" % (t, t, x))
        A("v_lshlrev_b32 v%d, 4, v%d" % (t, t))
        A("s_lshl_b32 s3, s%d, 3" % sW)
        A("v_add_u32 v%d, s3, v%d" % (u, u))
        A("v_lshl_add_u32 v%d, v%d, 13, v%d" % (vWdQ, u, t))
        A("v_mul_u32_u24 v%d, 3584, v%d" % (u, u))
        A("v_add_u32 v%d, v%d, v%d" % (vWdF, u, t))
        A("s_lshl_b32 s3, s%d, 4" % sQT)
        A("s_lshl_b32 s%d, s%d, 2" % (sT0, sW))
        A("s_add_u32 s3, s3, s%d" % sT0)
        A("s_mul_i32 s%d, s3, %d" % (sHOFF, 56*1024))
        A("s_lshl_b32 s%d, s3, 17" % sOOFF)
        A("s_lshl_b32 s3, s3, 14")
        for qs in range(4):
            A("v_add_u32 v%d, s3, v%d" % (vX+qs, vLane))
            if qs < 3: A("s_add_u32 s3, s3, 16384")
        A("s_waitcnt lgkmcnt(0)")
        A("s_lshl_b32 s3, s%d, 19" % sHEAD)
        srd(A, sK, 4, 5, 524288, "s3")
        srd(A, sV, 6, 7, 524288, "s3")
        A("s_lshl_b32 s3, s%d, 8" % sHEAD)
        srd(A, sWQ, 36, 37, "s_sub_u32 s%d, 0x400000, s3", "s3")
        A("s_min_u32 s3, s%d, 27" % sHEAD)
        A("s_lshl_b32 s3, s3, 7")
        srd(A, sW1, 38, 39, "s_sub_u32 s%d, " + str(512*3584) + ", s3", "s3")
        srd(A, sXN, 40, 41, XN_BYTES)
        srd(A, sH, 40, 41, H_BYTES, "0x%x" % WS_H)
        srd(A, sO, 40, 41, O_BYTES, "0x%x" % WS_O)
        A("s_mov_b32 s%d, 0" % sFLAG)
    def dma_w(self, which, m, label):
        A = self.A
        if which == 'Qa': lds, stride, col, sr, vo = 0 + m*4096, 8192, 0, sWQ, vWdQ
        elif which == 'Qb': lds, stride, col, sr, vo = 65536 + m*4096, 8192, 128, sWQ, vWdQ
        else: lds, stride, col, sr, vo = (LDS_C + m*4096 if m < 8 else m*4096), 3584, 0, sW1, vWdF
        A("s_add_u32 m0, s%d, 0x%x" % (sW1K, lds))
        A("s_mov_b32 s%d, 0x%x" % (sT0, m*32*stride + col))
        self.vm.issue("buffer_load_dwordx4 v%d, s[%d:%d], s%d offen lds" % (vo, sr, sr+3, sT0), label, ('dma', 'W'+which, m))
    def load_xn(self, s_):
        A = self.A
        if s_ % 4 == 0: A("s_mov_b32 s%d, %d" % (sT1, (s_ >> 2)*4096))
        for qs in range(4):
            r = (s_*4 + qs)*4
            self.vm.issue("buffer_load_dwordx4 %s, v%d, s[%d:%d], s%d offen offset:%d" % (a(r, 4), vX+qs, sXN, sXN+3, sT1, (s_ & 3)*1024), ('xn', s_))
    def dma_unit(self, kind, unit, label, soff=None, slot=None):
        A = self.A
        slot = unit % 8 if slot is None else slot
        base, sr, vo = (LDS_K, sK, vKd) if kind == 'K' else (LDS_V, sV, vVd)
        A("s_add_u32 m0, s%d, 0x%x" % (sW2K, base + slot*8192))
        if soff is None:
            A("s_mov_b32 s%d, 0x%x" % (sT0, unit*8192)); so = sT0
        else: so = soff
        self.vm.issue("buffer_load_dwordx4 v%d, s[%d:%d], s%d offen lds" % (vo, sr, sr+3, so), label, ('dma', kind+str(slot), unit))
        self.vm.issue("buffer_load_dwordx4 v%d, s[%d:%d], s%d offen offset:1024 lds" % (vo+1, sr, sr+3, so), label, ('dma', kind+str(slot), unit))
    def w_read(self, which, kap, par):
        out = []
        for tau in range(4):
            for hp in range(2):
                if which == 'Qa': ar, off = vWr+tau, kap*4096 + hp*512
                elif which == 'Qb': ar, off = vWr+tau, kap*4096 + hp*512
                else: ar, off = vWrF+tau, kap*4096 + hp*512
                out.append(("ds_read_b64_tr_b16 %s, v%d offset:%d" % (v(vWf+16*par+4*tau+2*hp, 2), ar, off), ('rd', 'W'+which, kap)))
        return out
    def pass_(self, which, hooks, nxt=None):
        A = self.A
        for kap in range(16):
            par = kap & 1
            pre_reads = []
            need_xn = self.vm.count_for(lambda l: l == ('xn', kap)) is not None
            if need_xn: self.vm.wait(lambda l: l == ('xn', kap), "lgkmcnt(0)")
            else: A("s_waitcnt lgkmcnt(0)")
            if kap in hooks: hooks[kap]()
            if which == 'F' and kap == 7:
                pass
            if kap < 15:
                reads = self.w_read(which, kap+1, par ^ 1)
                if which == 'F' and kap == 7:
                    for tau in range(4): A("v_subrev_u32 v%d, 0x%x, v%d" % (vWrF+tau, LDS_C, vWrF+tau))
            elif nxt:
                if nxt == 'Qb':
                    for tau in range(4): A("v_add_u32 v%d, 0x10000, v%d" % (vWr+tau, vWr+tau))
                reads = self.w_read(nxt, 0, par ^ 1)
            else: reads = []
            k = 0
            for tau in range(4):
                for qs in range(4):
                    d = v(vACC + (tau*4+qs)*4, 4)
                    A(mfma(d, v(vWf+16*par+4*tau, 4), a((kap*4+qs)*4, 4), "0" if kap == 0 else d))
                    if k % 2 == 0 and k//2 < len(reads):
                        t_, tg = reads[k//2]; A.i(t_, tg)
                    k += 1
    def q_epilogue(self, half):
        A = self.A
        A("s_mov_b32 s%d, %s" % (sT2, lit(QSCALE)))
        for ksl in range(2):
            for qs in range(4):
                for tt in range(2):
                    b = vACC + ((2*ksl+tt)*4 + qs)*4
                    for r in range(4): A("v_mul_f32 v%d, s%d, v%d" % (b+r, sT2, b+r))
        for ksl in range(2):
            for qs in range(4):
                dst = vQ + ((2*half+ksl)*4 + qs)*4
                for tt in range(2):
                    b = vACC + ((2*ksl+tt)*4 + qs)*4
                    A("v_cvt_pk_bf16_f32 v%d, v%d, v%d" % (dst+2*tt, b, b+1))
                    A("v_cvt_pk_bf16_f32 v%d, v%d, v%d" % (dst+2*tt+1, b+2, b+3))
    def f_epilogue(self):
        A = self.A
        nl = -math.log2(math.e)
        A("s_mov_b32 s%d, %s" % (sT2, lit(nl)))
        A("s_lshl_b32 s%d, s%d, 11" % (sT0, sHEAD))
        A("s_add_u32 s%d, s%d, s%d" % (sT0, sT0, sHOFF))
        for qs in range(4):
            for u in range(2):
                T = vT + ((qs*2+u) & 1)*16
                regs = [vACC + ((2*u+tt)*4 + qs)*4 + r for tt in range(2) for r in range(4)]
                for i, rg in enumerate(regs): A("v_mul_f32 v%d, s%d, v%d" % (T+i, sT2, rg))
                for i in range(8): A("v_exp_f32 v%d, v%d" % (T+i, T+i))
                for i in range(8): A("v_add_f32 v%d, 1.0, v%d" % (T+i, T+i))
                for i in range(8): A("v_rcp_f32 v%d, v%d" % (T+i, T+i))
                for i, rg in enumerate(regs): A("v_mul_f32 v%d, v%d, v%d" % (rg, rg, T+i))
                for i in range(4): A("v_cvt_pk_bf16_f32 v%d, v%d, v%d" % (T+8+i, regs[2*i], regs[2*i+1]))
                self.vm.issue("buffer_store_dwordx4 %s, v%d, s[%d:%d], s%d offen offset:%d" % (v(T+8, 4), vLane, sH, sH+3, sT0, u*1024), ('hst',))
            if qs < 3: A("s_add_u32 s%d, s%d, %d" % (sT0, sT0, 56*1024))
    def phase1(self):
        A = self.A; vm = self.vm
        def grp(i):
            for m in range(4*i, 4*i+4): self.dma_w('Qa', m, ('Qa', i))
            for s_ in range(4*i, 4*i+4): self.load_xn(s_)
        grp(0); grp(1); grp(2)
        vm.wait(lambda l: l == ('Qa', 0)); A("s_barrier")
        for t_, tg in self.w_read('Qa', 0, 0): A.i(t_, tg)
        def vis(lbl):
            vm.wait(lambda l: l == lbl); A("s_barrier")
        def h3(): vis(('Qa', 1)); grp(3)
        def h7():
            vis(('Qa', 2))
            for m in range(16): self.dma_w('Qb', m, ('Qb',))
        def h11():
            vis(('Qa', 3))
            for m in range(8): self.dma_w('F', m, ('F1',))
        def h15():
            vis(('Qb',))
            for u in range(4): self.dma_unit('K', u, ('K', u))
            for m in range(8, 16): self.dma_w('F', m, ('F2',))
        self.pass_('Qa', {3: h3, 7: h7, 11: h11, 15: h15}, 'Qb')
        self.q_epilogue(0)
        def h15b():
            vis(('F2',))
            for u in range(3): self.dma_unit('V', u, ('V', u))
        self.pass_('Qb', {15: h15b}, 'F')
        self.q_epilogue(1)
        if self.dbg == 'q': self.dump_q()
        A("s_cmp_ge_u32 s%d, 28" % sHEAD)
        A("s_cbranch_scc1 L2_skipF")
        snap = (list(vm.ops), vm.done)
        def h15c():
            vis(('V', 2))
            self.late_dma()
        self.pass_('F', {15: h15c}, None)
        self.f_epilogue()
        A("s_branch L2_att")
        A.label("L2_skipF")
        vm.ops, vm.done = list(snap[0]), snap[1]
        A("s_waitcnt lgkmcnt(0)")
        vm.wait(lambda l: l == ('V', 2)); A("s_barrier")
        self.late_dma()
        A.label("L2_att")
    def late_dma(self):
        self.dma_unit('K', 4, ('K', 4)); self.dma_unit('K', 5, ('K', 5))
        self.dma_unit('V', 3, ('V', 3)); self.dma_unit('K', 6, ('K', 6))
        self.dma_unit('V', 4, ('V', 4)); self.dma_unit('K', 7, ('K', 7))
    def dump_q(self):
        A = self.A
        A("s_add_u32 s56, s40, 0x%x" % WS_DBG); A("s_addc_u32 s57, s41, 0"); A("s_mov_b32 s58, 0x1000000"); A("s_mov_b32 s59, 0x00020000")
        A("s_lshl_b32 s3, s2, 2"); A("s_add_u32 s3, s3, s%d" % sW); A("s_lshl_b32 s3, s3, 14")
        for f in range(16):
            self.vm.issue("buffer_store_dwordx4 %s, v%d, s[56:59], s3 offen offset:%d" % (v(vQ+4*f, 4), vLane, (f & 3)*1024), ('dbg',))
            if f & 3 == 3: A("s_add_u32 s3, s3, 4096")
    def k_reads(self, unit):
        slot = unit % 8; out = []
        for ks in range(4):
            for kt in range(2):
                out.append(("ds_read_b128 %s, v%d offset:%d" % (a(aK+(ks*2+kt)*4, 4), vKr+ks, slot*8192 + kt*4096), ('rd', 'K%d' % slot, unit)))
        return out
    def v_reads(self, unit):
        slot = unit % 8; out = []
        for dt in range(8):
            for hf in range(2):
                out.append(("ds_read_b64_tr_b16 %s, v%d offset:%d" % (a(aV+dt*4+2*hf, 2), vVr+dt, slot*8192 + hf*4096), ('rd', 'V%d' % slot, unit)))
        return out
    def qk_mfmas(self, sbuf, czero=False):
        out = []
        for ks in range(4):
            for kt in range(2):
                for qs in range(4):
                    d = v(vS+32*sbuf+(kt*4+qs)*4, 4)
                    c = d if ks else ("0" if czero else v(vNM+4*qs, 4))
                    out.append(mfma(d, a(aK+(ks*2+kt)*4, 4), v(vQ+(ks*4+qs)*4, 4), c))
        return out
    def pv_mfmas(self, pbuf, czero=False):
        out = []
        for dt in range(8):
            for qs in range(4):
                d = a(aO+(dt*4+qs)*4, 4)
                out.append(mfma(d, a(aV+dt*4, 4), v(vP+16*pbuf+4*qs, 4), "0" if czero else d))
        return out
    def sm_valu(self, buf, first=False):
        S = vS+32*buf; P = vP+16*buf
        seq = []
        for qs in range(4):
            for kt in range(2):
                for r in range(4): seq.append((qs, kt, r, S+(kt*4+qs)*4+r))
        out = []
        for i in range(len(seq)+2):
            if i < 32: out.append(("v_exp_f32 v%d, v%d" % (seq[i][3], seq[i][3]), 8))
            j = i-1
            if 0 <= j < 32:
                qs, kt, r, rg = seq[j]
                if first and kt == 0 and r == 0: out.append(("v_mov_b32 v%d, v%d" % (vL+qs, rg), 4))
                else: out.append(("v_add_f32 v%d, v%d, v%d" % (vL+qs, vL+qs, rg), 4))
                if r & 1: out.append(("v_cvt_pk_bf16_f32 v%d, v%d, v%d" % (P+qs*4+kt*2+(r >> 1), rg-1, rg), 4))
        return out
    def step(self, u, do_qk=True, do_pv=True, first_pv=False, first_sm=False, do_kread=True, do_dma=True, barrier=None, tagu=None):
        A = self.A
        M = []
        if do_qk: M += self.qk_mfmas((u+1) & 1)
        nqk = len(M)
        if do_pv: M += self.pv_mfmas((u-1) & 1, first_pv)
        n = len(M)
        extra = {}
        def put(pos, item): extra.setdefault(pos, []).append(item)
        if do_pv:
            vr = self.v_reads(u-1)
            span = (nqk - 8) if nqk else 1
            for i, it in enumerate(vr): put((i*span)//16 if nqk else -1, it)
        if do_kread:
            kr = self.k_reads(u+2)
            base = nqk if do_pv else max(0, n-26)
            for i, it in enumerate(kr): put(base + (i*24)//8 if do_pv else 4*i+3, it)
        if do_dma:
            pV = max(0, nqk - 7); pK = n - 7
            if not do_pv: pV = pK - 8
            assert abs(pV - pK) > 2
            put(pV, (["s_add_u32 m0, s%d, 0x%x" % (sW2K, LDS_V + ((u+5) % 8)*8192),
                      "buffer_load_dwordx4 v%d, s[%d:%d], s%d offen lds" % (vVd, sV, sV+3, sVo)], ('dma', 'V%d' % ((u+5) % 8), u+5)))
            put(pV+2, (["buffer_load_dwordx4 v%d, s[%d:%d], s%d offen offset:1024 lds" % (vVd+1, sV, sV+3, sVo),
                        "s_add_u32 s%d, s%d, 8192" % (sVo, sVo)], ('dma', 'V%d' % ((u+5) % 8), u+5)))
            put(pK, (["s_add_u32 m0, s%d, 0x%x" % (sW2K, LDS_K + (u % 8)*8192),
                      "buffer_load_dwordx4 v%d, s[%d:%d], s%d offen lds" % (vKd, sK, sK+3, sKo)], ('dma', 'K%d' % (u % 8), u+8)))
            put(pK+2, (["buffer_load_dwordx4 v%d, s[%d:%d], s%d offen offset:1024 lds" % (vKd+1, sK, sK+3, sKo),
                        "s_add_u32 s%d, s%d, 8192" % (sKo, sKo)], ('dma', 'K%d' % (u % 8), u+8)))
        F = self.sm_valu(u & 1, first_sm)
        ecost = {}
        for pos, items in extra.items():
            ecost[pos] = sum(4*(len(t) if isinstance(t, list) else 1) for t, _ in items)
        total = sum(c for _, c in F) + sum(c for p, c in ecost.items() if p >= 0)
        done = 0; fi = 0
        def emit_extra(pos):
            for t_, tg in extra.get(pos, []):
                if isinstance(t_, list):
                    for x in t_: A.i(x, tg if "buffer_load" in x else None)
                else: A.i(t_, tg)
        if -1 in extra:
            emit_extra(-1)
        for k, m in enumerate(M):
            if do_pv and k == nqk: A("s_waitcnt lgkmcnt(0)")
            A(m)
            emit_extra(k); done += ecost.get(k, 0)
            target = total*(k+1)/n
            while fi < len(F) and done + F[fi][1]/2.0 <= target:
                A(F[fi][0]); done += F[fi][1]; fi += 1
        while fi < len(F): A(F[fi][0]); fi += 1
        if barrier is not None:
            A("s_waitcnt vmcnt(%d) lgkmcnt(0)" % barrier); A("s_barrier")
        else:
            A("s_waitcnt lgkmcnt(0)")
    def allreduce_g(self, r, t, op):
        A = self.A
        A("v_mov_b32 v%d, v%d" % (t, r))
        A("v_permlane16_swap_b32 v%d, v%d" % (r, t))
        A("%s v%d, v%d, v%d" % (op, r, r, t))
        A("v_mov_b32 v%d, v%d" % (t, r))
        A("v_permlane32_swap_b32 v%d, v%d" % (r, t))
        A("%s v%d, v%d, v%d" % (op, r, r, t))
    def set_negm(self, mx):
        A = self.A
        for qs in range(4): self.allreduce_g(mx+qs, vT+8+qs, "v_max_f32")
        for qs in range(4):
            for r in range(4): A("v_sub_f32 v%d, 0, v%d" % (vNM+4*qs+r, mx+qs))
    def attention(self):
        A = self.A
        for t_, tg in self.k_reads(0): A.i(t_, tg)
        A("s_mov_b32 s%d, 0x%x" % (sKo, 8*8192))
        A("s_mov_b32 s%d, 0x%x" % (sVo, 5*8192))
        A("s_waitcnt lgkmcnt(0)")
        for m in self.qk_mfmas(0, czero=True): A(m)
        for t_, tg in self.k_reads(1): A.i(t_, tg)
        A("s_cmp_lg_u32 s%d, 0" % sFLAG)
        A("s_cbranch_scc1 L2_havem")
        mx = vT
        for qs in range(4):
            S = [vS+(kt*4+qs)*4+r for kt in range(2) for r in range(4)]
            A("v_max3_f32 v%d, v%d, v%d, v%d" % (mx+qs, S[0], S[1], S[2]))
            A("v_max3_f32 v%d, v%d, v%d, v%d" % (mx+qs, mx+qs, S[3], S[4]))
            A("v_max3_f32 v%d, v%d, v%d, v%d" % (mx+qs, mx+qs, S[5], S[6]))
            A("v_max_f32 v%d, v%d, v%d" % (mx+qs, mx+qs, S[7]))
        self.set_negm(mx)
        A.label("L2_havem")
        A("s_nop 7")
        for qs in range(4):
            for kt in range(2):
                for r in range(4):
                    rg = vS+(kt*4+qs)*4+r
                    A("v_add_f32 v%d, v%d, v%d" % (rg, rg, vNM+4*qs+r))
        A("s_waitcnt lgkmcnt(0)")
        A("s_barrier")
        self.step(0, do_pv=False, first_sm=True)
        A("s_mov_b32 s%d, 0" % sCNT)
        self.step(1, first_pv=True, barrier=16)
        A("s_branch L2_loop2")
        A.label("L2_loop")
        self.loop_start = len(A.code)
        self.step(1+8, barrier=16)
        A.label("L2_loop2")
        for p in range(2, 9):
            self.step(p+8, barrier=16 if p & 1 else None)
            if p == 6:
                A("s_cmp_eq_u32 s%d, 7" % sCNT)
                A("s_cbranch_scc1 L2_tail")
        A("s_add_u32 s%d, s%d, 1" % (sCNT, sCNT))
        A("s_branch L2_loop")
        A.label("L2_tail")
        self.step(63, do_qk=False, do_kread=False, do_dma=False, barrier=12)
        for t_, tg in self.v_reads(63): A.i(t_, tg)
        A("s_waitcnt lgkmcnt(0)")
        for m in self.pv_mfmas(63 & 1): A(m)
    def epilogue(self):
        A = self.A
        for qs in range(4): self.allreduce_g(vL+qs, vT+qs, "v_add_f32")
        A("s_mov_b32 s%d, %s" % (sT2, lit(2.0**120)))
        A("s_mov_b64 s[56:57], -1")
        for qs in range(4):
            A("v_cmp_gt_f32 vcc, s%d, v%d" % (sT2, vL+qs))
            A("s_and_b64 s[56:57], s[56:57], vcc")
        for qs in range(4): A("v_rcp_f32 v%d, v%d" % (vL+qs, vL+qs))
        mx = vT+4
        A("v_mov_b32 v%d, 0" % mx)
        A("s_lshl_b32 s%d, s%d, 12" % (sT0, sHEAD))
        A("s_add_u32 s%d, s%d, s%d" % (sT0, sT0, sOOFF))
        n = 0
        for qs in range(4):
            for t in range(4):
                T = vS + (n % 4)*16; n += 1
                for tt in range(2):
                    for r in range(4):
                        A("v_accvgpr_read_b32 v%d, a%d" % (T+tt*4+r, aO+((2*t+tt)*4+qs)*4+r))
                for i in range(8): A("v_mul_f32 v%d, v%d, v%d" % (T+i, T+i, vL+qs))
                for i in range(4): A("v_maximum3_f32 v%d, v%d, |v%d|, |v%d|" % (mx, mx, T+2*i, T+2*i+1))
                for i in range(4): A("v_cvt_pk_bf16_f32 v%d, v%d, v%d" % (T+8+i, T+2*i, T+2*i+1))
                A("buffer_store_dwordx4 %s, v%d, s[%d:%d], s%d offen offset:%d" % (v(T+8, 4), vLane, sO, sO+3, sT0, t*1024))
            if qs < 3: A("s_add_u32 s%d, s%d, %d" % (sT0, sT0, 128*1024))
        A("s_cmp_lg_u32 s%d, 0" % sFLAG)
        A("s_cbranch_scc1 L2_end")
        A("s_mov_b32 s%d, 0x7f800000" % sT2)
        A("v_cmp_gt_f32 vcc, s%d, v%d" % (sT2, mx))
        A("s_and_b64 s[56:57], s[56:57], vcc")
        A("s_cmp_eq_u64 s[56:57], -1")
        A("s_cselect_b32 s%d, 0, 1" % sT1)
        A("v_mov_b32 v%d, s%d" % (vT+6, sT1))
        A("v_mov_b32 v%d, s%d" % (vT+7, sW))
        A("v_lshlrev_b32 v%d, 2, v%d" % (vT+7, vT+7))
        A("v_add_u32 v%d, 0x%x, v%d" % (vT+7, LDS_C, vT+7))
        A("ds_write_b32 v%d, v%d" % (vT+7, vT+6))
        A("v_mov_b32 v%d, 0x%x" % (vT+7, LDS_C))
        A("s_waitcnt lgkmcnt(0)")
        A("s_barrier")
        A("ds_read_b128 %s, v%d" % (v(vT+8, 4), vT+7))
        A("s_waitcnt lgkmcnt(0)")
        A("v_or_b32 v%d, v%d, v%d" % (vT+8, vT+8, vT+9))
        A("v_or3_b32 v%d, v%d, v%d, v%d" % (vT+8, vT+8, vT+10, vT+11))
        A("v_readfirstlane_b32 s%d, v%d" % (sT1, vT+8))
        A("s_cmp_eq_u32 s%d, 0" % sT1)
        A("s_cbranch_scc1 L2_end")
    def fallback(self):
        A = self.A
        vm = self.vm
        A("s_waitcnt vmcnt(0) lgkmcnt(0)")
        A("s_barrier")
        mx = vT
        for qs in range(4): A("v_mov_b32 v%d, 0xff800000" % (mx+qs))
        A("s_mov_b32 s%d, 0" % sKo)
        A.label("L2_mx")
        A("s_add_u32 m0, s%d, 0x%x" % (sW2K, LDS_K))
        A("s_nop 0")
        A("buffer_load_dwordx4 v%d, s[%d:%d], s%d offen lds" % (vKd, sK, sK+3, sKo))
        A("buffer_load_dwordx4 v%d, s[%d:%d], s%d offen offset:1024 lds" % (vKd+1, sK, sK+3, sKo))
        A("s_waitcnt vmcnt(0)")
        A("s_barrier")
        for t_, tg in self.k_reads(0): A(t_)
        A("s_waitcnt lgkmcnt(0)")
        A("s_barrier")
        for m in self.qk_mfmas(0, czero=True): A(m)
        for qs in range(4):
            S = [vS+(kt*4+qs)*4+r for kt in range(2) for r in range(4)]
            A("v_max3_f32 v%d, v%d, v%d, v%d" % (mx+qs, mx+qs, S[0], S[1]))
            A("v_max3_f32 v%d, v%d, v%d, v%d" % (mx+qs, mx+qs, S[2], S[3]))
            A("v_max3_f32 v%d, v%d, v%d, v%d" % (mx+qs, mx+qs, S[4], S[5]))
            A("v_max3_f32 v%d, v%d, v%d, v%d" % (mx+qs, mx+qs, S[6], S[7]))
        A("s_add_u32 s%d, s%d, 8192" % (sKo, sKo))
        A("s_cmp_lt_u32 s%d, 0x80000" % sKo)
        A("s_cbranch_scc1 L2_mx")
        self.set_negm(mx)
        A("s_mov_b32 s%d, 1" % sFLAG)
        vm.ops = []; vm.done = 0
        for u in range(4): self.dma_unit('K', u, ('K', u))
        for u in range(3): self.dma_unit('V', u, ('V', u))
        A("s_waitcnt vmcnt(0)")
        A("s_barrier")
        self.late_dma()
        A("s_branch L2_att")
    def gen(self):
        A = self.A
        self.setup()
        self.phase1()
        if self.dbg == 'q':
            A("s_waitcnt vmcnt(0)"); A("s_branch L2_end")
        self.attention()
        self.epilogue()
        self.fallback()
        A.label("L2_end")
        A("s_endpgm")
        B = finalize(A.code, name="k2")
        self.final = B
        return kernel_head(self.name) + B.text() + kernel_block(self.name, 512, 256, sgprs=72)
if __name__ == "__main__":
    k = K2()
    t = k.gen()
    print(len(t.splitlines()), "lines")
    tr = make_trace(k.final.code, {"L2_loop": [], "L2_tail": [False]*7 + [True], "L2_end": [False, False, True], "L2_skipF": [False], "L2_havem": [False]})
    print("trace len", len(tr))
    _, probs = check_hazards(tr)
    print("hazards in trace:", len(probs), probs[:10])
```

```python
from common import *
import math
sO, sH, sWO, sW2, sX, sOUT = 8, 12, 16, 20, 24, 28
sW, sQT, sNT, sLB, sT0, sT1, sT2, sSo, sBo = 40, 41, 42, 43, 44, 45, 46, 47, 48
vWf = 0
vBH = 32; vBO = 36; vWd = 40; vWr = 44; vXo = 48; vXv = 50
vRed = 60
vT = 64
aS = 0; aG = 64; aB = 128
NF, NO = 14, 32
NK = NF + NO
def mfma(d, a_, b_, c): return "v_mfma_f32_16x16x32_bf16 %s, %s, %s, %s" % (d, a_, b_, c)

class K3:
    def __init__(self, name="out_kernel", look=7, nslot=8):
        self.A = Asm(); self.vm = VM(self.A); self.name = name; self.look = look; self.nslot = nslot
    def setup(self):
        A = self.A
        A.lines("""
s_cmp_ge_u32 s2, 256
s_cbranch_scc1 L3_end
s_load_dwordx2 s[4:5], s[0:1], 0
s_load_dwordx2 s[6:7], s[0:1], 32
s_load_dwordx4 s[32:35], s[0:1], 56
s_load_dwordx2 s[36:37], s[0:1], 80
v_lshrrev_b32 v%(t0)d, 6, v0
v_and_b32 v%(t1)d, 63, v0
s_and_b32 s%(qt)d, s2, 7
s_lshr_b32 s3, s2, 6
s_lshl_b32 s3, s3, 3
s_add_u32 s%(qt)d, s%(qt)d, s3
s_lshr_b32 s%(nt)d, s2, 3
s_and_b32 s%(nt)d, s%(nt)d, 7
v_readfirstlane_b32 s%(w)d, v%(t0)d
""" % dict(t0=vT, t1=vT+1, qt=sQT, nt=sNT, w=sW))
        ln = vT+1; g = vT+2; c = vT+3; r = vT+4; cc = vT+5; t = vT+6; u = vT+7; x = vT+8; l16 = vT+9
        A("v_lshrrev_b32 v%d, 4, v%d" % (g, ln))
        A("v_and_b32 v%d, 15, v%d" % (c, ln))
        A("v_lshrrev_b32 v%d, 2, v%d" % (r, c))
        A("v_and_b32 v%d, 3, v%d" % (cc, ln))
        A("v_lshlrev_b32 v%d, 4, v%d" % (l16, ln))
        A("s_lshl_b32 s%d, s%d, 15" % (sLB, sW))
        A("s_lshl_b32 s3, s%d, 2" % sQT)
        A("s_mul_i32 s%d, s3, 56" % sT0)
        A("s_mul_i32 s%d, s%d, %d" % (sT1, sW, NF))
        A("s_add_u32 s%d, s%d, s%d" % (sT0, sT0, sT1))
        A("s_lshl_b32 s%d, s%d, 10" % (sT0, sT0))
        for qs in range(4):
            A("v_add_u32 v%d, s%d, v%d" % (vBH+qs, sT0, l16))
            if qs < 3: A("s_add_u32 s%d, s%d, %d" % (sT0, sT0, 56*1024))
        A("s_lshl_b32 s%d, s3, 7" % sT0)
        A("s_lshl_b32 s%d, s%d, 5" % (sT1, sW))
        A("s_add_u32 s%d, s%d, s%d" % (sT0, sT0, sT1))
        A("s_lshl_b32 s%d, s%d, 10" % (sT0, sT0))
        for qs in range(4):
            A("v_add_u32 v%d, s%d, v%d" % (vBO+qs, sT0, l16))
            if qs < 3: A("s_add_u32 s%d, s%d, %d" % (sT0, sT0, 128*1024))
        A("v_lshrrev_b32 v%d, 3, v%d" % (u, ln))
        A("v_lshlrev_b32 v%d, 1, v%d" % (x, g))
        A("v_and_b32 v%d, 7, v%d" % (t, ln))
        A("v_xor_b32 v%d, v%d, v%d" % (t, t, x))
        A("v_lshlrev_b32 v%d, 4, v%d" % (t, t))
        A("v_lshl_add_u32 v%d, v%d, 10, v%d" % (vWd, u, t))
        for p in range(1, 4): A("v_add_u32 v%d, %d, v%d" % (vWd+p, 7168*p, vWd))
        A("v_and_b32 v%d, 1, v%d" % (x, g))
        A("v_lshrrev_b32 v%d, 1, v%d" % (t, r))
        A("v_lshl_add_u32 v%d, v%d, 1, v%d" % (x, x, t))
        A("v_lshl_add_u32 v%d, v%d, 2, v%d" % (u, g, r))
        A("v_lshlrev_b32 v%d, 7, v%d" % (u, u))
        A("v_lshl_add_u32 v%d, v%d, 3, v%d" % (u, cc, u))
        A("v_add_u32 v%d, s%d, v%d" % (u, sLB, u))
        for tau in range(4):
            A("v_xor_b32 v%d, %d, v%d" % (t, tau, x))
            A("v_lshl_add_u32 v%d, v%d, 5, v%d" % (vWr+tau, t, u))
        A("s_lshl_b32 s3, s%d, 6" % sQT)
        A("s_lshl_b32 s%d, s%d, 4" % (sT0, sW))
        A("s_add_u32 s3, s3, s%d" % sT0)
        A("v_add_u32 v%d, s3, v%d" % (t, c))
        A("v_lshlrev_b32 v%d, 10, v%d" % (t, t))
        A("v_lshl_add_u32 v%d, v%d, 3, v%d" % (t, g, t))
        A("s_lshl_b32 s3, s%d, 7" % sNT)
        A("v_add_u32 v%d, s3, v%d" % (vXo, t))
        A("s_lshl_b32 s3, s%d, 13" % sW)
        A("v_add_u32 v%d, s3, v%d" % (vRed, l16))
        A("v_add_u32 v%d, s%d, v%d" % (vRed+1, sLB, l16))
        A("s_waitcnt lgkmcnt(0)")
        A("s_lshl_b32 s3, s%d, 7" % sNT)
        A("s_mul_i32 s%d, s%d, %d" % (sT0, sW, NO*32768))
        A("s_add_u32 s%d, s%d, s3" % (sT0, sT0))
        srd(A, sWO, 6, 7, "s_sub_u32 s%%d, 0x400000, s%d" % sT0, "s%d" % sT0)
        A("s_mul_i32 s%d, s%d, %d" % (sT0, sW, NF*32768))
        A("s_add_u32 s%d, s%d, s3" % (sT0, sT0))
        srd(A, sW2, 32, 33, "s_sub_u32 s%%d, %d, s%d" % (1792*1024, sT0), "s%d" % sT0)
        srd(A, sO, 36, 37, O_BYTES, "0x%x" % WS_O)
        srd(A, sH, 36, 37, H_BYTES, "0x%x" % WS_H)
        srd(A, sX, 4, 5, 2048*1024)
        srd(A, sOUT, 34, 35, 2048*1024)
    def issue_loads(self, j):
        A = self.A; slot = j % self.nslot
        if j < NF: sw, sb, vb, jj = sW2, sH, vBH, j
        else: sw, sb, vb, jj = sWO, sO, vBO, j - NF
        A("s_add_u32 m0, s%d, 0x%x" % (sLB, slot*4096))
        A("s_mov_b32 s%d, 0x%x" % (sSo, jj*32768))
        for p in range(4):
            self.vm.issue("buffer_load_dwordx4 v%d, s[%d:%d], s%d offen offset:%d lds" % (vWd+p, sw, sw+3, sSo, p*1024), ('W', j), ('dma', 'p_W%d' % slot, j))
        if jj % 4 == 0: A("s_mov_b32 s%d, 0x%x" % (sBo, jj*1024))
        for qs in range(4):
            self.vm.issue("buffer_load_dwordx4 %s, v%d, s[%d:%d], s%d offen offset:%d" % (a(aB+slot*16+qs*4, 4), vb+qs, sb, sb+3, sBo, (jj & 3)*1024), ('B', j))
    def w_reads(self, j):
        slot = j % self.nslot; par = j & 1; out = []
        for tau in range(4):
            for hp in range(2):
                out.append(("ds_read_b64_tr_b16 %s, v%d offset:%d" % (v(vWf+16*par+4*tau+2*hp, 2), vWr+tau, slot*4096 + hp*2048), ('rd', 'p_W%d' % slot, j)))
        return out
    def main(self):
        A = self.A; vm = self.vm
        for j in range(self.look): self.issue_loads(j)
        vm.wait(lambda l: l == ('W', 0))
        for t_, tg in self.w_reads(0): A.i(t_, tg)
        for j in range(NK):
            par = j & 1; slot = j % self.nslot
            if j+1 < NK: vm.wait(lambda l: l == ('W', j+1) or l == ('B', j), "lgkmcnt(0)")
            else: vm.wait(lambda l: l == ('B', j), "lgkmcnt(0)")
            reads = self.w_reads(j+1) if j+1 < NK else []
            acc = aG if j < NF else aS
            first = j == 0 or j == NF
            k = 0
            for tau in range(4):
                for qs in range(4):
                    d = a(acc+(tau*4+qs)*4, 4)
                    A(mfma(d, v(vWf+16*par+4*tau, 4), a(aB+slot*16+qs*4, 4), "0" if first else d))
                    if k < len(reads): A.i(*reads[k])
                    if k == 8 and j + self.look < NK: self.issue_loads(j + self.look)
                    if k == 8 and j + self.look == NK:
                        for tau2 in range(4):
                            vm.issue("buffer_load_dwordx2 %s, v%d, s[%d:%d], 0 offen offset:%d" % (v(vXv+2*tau2, 2), vXo, sX, sX+3, tau2*32), ('x',))
                    k += 1
    def reduce(self):
        A = self.A; vm = self.vm
        A("s_barrier")
        for dst in range(4):
            if dst == 1: A("v_add_u32 v%d, 0x8000, v%d" % (vRed, vRed))
            if dst == 2: A("v_add_u32 v%d, 0x8000, v%d" % (vRed, vRed))
            if dst == 3: A("v_add_u32 v%d, 0x8000, v%d" % (vRed, vRed))
            for sg, base in enumerate((aS, aG)):
                for tau in range(4):
                    A("ds_write_b128 v%d, %s offset:%d" % (vRed, a(base+(tau*4+dst)*4, 4), sg*4096 + tau*1024))
        A("s_waitcnt lgkmcnt(0)")
        A("s_barrier")
        R = vT
        for src in range(4):
            for sg in range(2):
                for tau in range(4):
                    A("ds_read_b128 %s, v%d offset:%d" % (v(R+src*32+sg*16+tau*4, 4), vRed+1, src*8192 + sg*4096 + tau*1024))
            if src == 1:
                A("s_waitcnt lgkmcnt(0)")
        A("s_waitcnt lgkmcnt(0)")
        for i in range(32): A("v_add_f32 v%d, v%d, v%d" % (R+i, R+i, R+32+i))
        for i in range(32): A("v_add_f32 v%d, v%d, v%d" % (R+64+i, R+64+i, R+96+i))
        for i in range(32): A("v_add_f32 v%d, v%d, v%d" % (R+i, R+i, R+64+i))
        S = R; G = R+16; T = R+32; U = R+48
        def rnd(base, n, tmp):
            for i in range(0, n, 2): A("v_cvt_pk_bf16_f32 v%d, v%d, v%d" % (tmp+i//2, base+i, base+i+1))
            for i in range(0, n, 2):
                A("v_lshlrev_b32 v%d, 16, v%d" % (base+i, tmp+i//2))
                A("v_and_b32 v%d, 0xffff0000, v%d" % (base+i+1, tmp+i//2))
        rnd(G, 16, T); rnd(S, 16, U)
        A("s_mov_b32 s%d, %s" % (sT2, lit(-math.log2(math.e))))
        for i in range(16): A("v_mul_f32 v%d, s%d, v%d" % (T+i, sT2, G+i))
        for i in range(16): A("v_exp_f32 v%d, v%d" % (T+i, T+i))
        for i in range(16): A("v_add_f32 v%d, 1.0, v%d" % (T+i, T+i))
        for i in range(16): A("v_rcp_f32 v%d, v%d" % (T+i, T+i))
        for i in range(16): A("v_mul_f32 v%d, v%d, v%d" % (G+i, G+i, T+i))
        rnd(G, 16, T)
        for i in range(16): A("v_mul_f32 v%d, v%d, v%d" % (S+i, S+i, G+i))
        rnd(S, 16, T)
        vm.wait(lambda l: l == ('x',))
        for i in range(8):
            A("v_lshlrev_b32 v%d, 16, v%d" % (G+2*i, vXv+i))
            A("v_and_b32 v%d, 0xffff0000, v%d" % (G+2*i+1, vXv+i))
        for i in range(16): A("v_add_f32 v%d, v%d, v%d" % (S+i, S+i, G+i))
        for i in range(8): A("v_cvt_pk_bf16_f32 v%d, v%d, v%d" % (T+i, S+2*i, S+2*i+1))
        for tau in range(4):
            A("buffer_store_dwordx2 %s, v%d, s[%d:%d], 0 offen offset:%d" % (v(T+2*tau, 2), vXo, sOUT, sOUT+3, tau*32))
    def gen(self):
        A = self.A
        self.setup(); self.main(); self.reduce()
        A.label("L3_end"); A("s_endpgm")
        B = finalize(A.code, name="k3"); self.final = B
        return kernel_head(self.name) + B.text() + kernel_block(self.name, 512, 256, sgprs=56)
if __name__ == "__main__":
    k = K3(); t = k.gen()
    print(len(t.splitlines()), "lines")
    tr = make_trace(k.final.code)
    print("hazards:", check_hazards(tr)[1][:5])
    e = check_waits(tr); print("wait errs:", len(e), e[:10])
```

```python
import re
from collections import deque

def v(n, c=1): return "v%d" % n if c == 1 else "v[%d:%d]" % (n, n + c - 1)
def a(n, c=1): return "a%d" % n if c == 1 else "a[%d:%d]" % (n, n + c - 1)
def s(n, c=1): return "s%d" % n if c == 1 else "s[%d:%d]" % (n, n + c - 1)

REG_RE = re.compile(r"^(-|\|)?(abs\()?([vas])(\d+|\[(\d+):(\d+)\])\)?\|?$")
def regs_of(tok):
    tok = tok.strip()
    if tok in ("vcc", "exec"): return {(tok, 0), (tok, 1)}
    if tok == "vcc_lo": return {("vcc", 0)}
    if tok == "vcc_hi": return {("vcc", 1)}
    if tok == "exec_lo": return {("exec", 0)}
    if tok == "exec_hi": return {("exec", 1)}
    if tok == "m0": return {("m0", 0)}
    t = tok.replace("|", "").replace("abs(", "").replace(")", "")
    if t.startswith("-"): t = t[1:]
    m = re.match(r"^([vas])(\d+)$", t)
    if m: return {(m.group(1), int(m.group(2)))}
    m = re.match(r"^([vas])\[(\d+):(\d+)\]$", t)
    if m: return {(m.group(1), k) for k in range(int(m.group(2)), int(m.group(3)) + 1)}
    return set()

TRANS = ("v_exp_f32", "v_log_f32", "v_rcp_f32", "v_rsq_f32", "v_sqrt_f32", "v_sin_f32", "v_cos_f32", "v_rcp_iflag_f32")
NO_DST_S = ("s_cmp", "s_waitcnt", "s_barrier", "s_branch", "s_cbranch", "s_nop", "s_setprio", "s_sleep", "s_endpgm", "s_bitcmp", "s_setreg", "s_sendmsg")
SCC_WR = ("s_add", "s_sub", "s_lshl", "s_lshr", "s_ashr", "s_and", "s_or", "s_xor", "s_andn2", "s_orn2", "s_cmp", "s_min", "s_max", "s_not", "s_bitcmp", "s_bfe", "s_addk", "s_abs", "s_nand", "s_nor", "s_xnor")

class I:
    __slots__ = ("text", "op", "ops", "mods", "rd", "wr", "kind", "tag", "passes", "nop", "note", "srcC", "srcAB", "label", "target")
    def __init__(self, text, tag=None, note=None):
        self.text = text; self.tag = tag; self.note = note
        self.rd = set(); self.wr = set(); self.passes = 0; self.nop = 0
        self.srcC = set(); self.srcAB = set(); self.label = None; self.target = None
        t = text.strip()
        if t.endswith(":") and " " not in t:
            self.kind = "label"; self.op = ""; self.label = t[:-1]; self.ops = []; self.mods = ""; return
        if t.startswith(";") or t.startswith(".") or t == "":
            self.kind = "dir"; self.op = ""; self.ops = []; self.mods = ""; return
        parts = t.split(None, 1)
        op = parts[0]; self.op = op
        rest = parts[1] if len(parts) > 1 else ""
        ops = []; cur = ""; depth = 0
        for ch in rest:
            if ch in "[(": depth += 1
            if ch in "])": depth -= 1
            if ch == "," and depth == 0: ops.append(cur.strip()); cur = ""
            else: cur += ch
        mods = ""
        if cur.strip():
            c = cur.strip()
            sp = c.split(None, 1)
            if op.startswith("s_waitcnt"):
                ops.append(c)
            else:
                ops.append(sp[0]); mods = sp[1] if len(sp) > 1 else ""
        self.ops = ops; self.mods = mods
        R = [regs_of(o) for o in ops]
        base = re.sub(r"_(e32|e64|dpp|sdwa)$", "", op)
        if op.startswith("v_mfma"):
            self.kind = "mfma"
            self.passes = 8 if "32x32" in op else 4
            if "32x32x2_f32" in op or "32x32x1" in op: self.passes = 16
            self.wr = set(R[0]); self.srcAB = R[1] | R[2]; self.srcC = set(R[3]); self.rd = self.srcAB | self.srcC
        elif op.startswith("v_"):
            self.kind = "trans" if base in TRANS else "valu"
            if base.startswith("v_cmpx"):
                self.wr = R[0] | {("exec", 0), ("exec", 1)}; self.rd = set().union(*R[1:])
            elif base.startswith("v_cmp"):
                self.wr = set(R[0]); self.rd = set().union(*R[1:])
            elif base.startswith("v_permlane") and "swap" in base:
                self.wr = R[0] | R[1]; self.rd = R[0] | R[1]
            elif base in ("v_add_co_u32", "v_sub_co_u32", "v_subrev_co_u32"):
                self.wr = R[0] | R[1]; self.rd = set().union(*R[2:])
            elif base in ("v_addc_co_u32", "v_subb_co_u32"):
                self.wr = R[0] | R[1]; self.rd = set().union(*R[2:])
            elif base in ("v_fmac_f32", "v_dot2c_f32_bf16", "v_pk_fmac_f16", "v_mac_f32"):
                self.wr = set(R[0]); self.rd = set().union(*R)
            elif base == "v_writelane_b32":
                self.wr = set(R[0]); self.rd = set().union(*R)
            else:
                self.wr = set(R[0]); self.rd = set().union(*R[1:]) if len(R) > 1 else set()
                if base == "v_cndmask_b32" and len(ops) == 3: self.rd |= {("vcc", 0), ("vcc", 1)}
            if "dpp" in op or any(k in mods for k in ("row_shr", "row_shl", "row_ror", "quad_perm", "row_bcast", "row_mirror", "row_half_mirror", "wave_")):
                self.note = (self.note or "") + " DPP"
                self.rd |= self.wr if "bound_ctrl" not in mods else set()
            self.rd |= {("exec", 0), ("exec", 1)}
        elif op.startswith("ds_"):
            self.kind = "ds"
            if op.startswith("ds_read") or op.startswith("ds_bpermute") or op.startswith("ds_permute") or op.startswith("ds_swizzle"):
                self.wr = set(R[0]); self.rd = set().union(*R[1:])
            else:
                self.rd = set().union(*R)
            self.rd |= {("exec", 0), ("exec", 1)}
        elif op.startswith("buffer_") or op.startswith("global_"):
            self.kind = "vmem"
            lds = (" lds" in (" " + mods)) or "_lds_" in op
            if op in ("buffer_wbl2", "buffer_inv"):
                pass
            elif lds:
                self.rd = set().union(*R) | {("m0", 0)}; self.note = (self.note or "") + " DMA"
            elif "_load" in op:
                self.wr = set(R[0]); self.rd = set().union(*R[1:])
            elif "atomic" in op:
                if "sc0" in mods and op.startswith("global_") and len(ops) == 4:
                    self.wr = set(R[0]); self.rd = set().union(*R[1:])
                elif "sc0" in mods and op.startswith("buffer_"):
                    self.wr = set(R[0]); self.rd = set().union(*R)
                else:
                    self.rd = set().union(*R)
            else:
                self.rd = set().union(*R); self.note = (self.note or "") + " STORE"
            self.rd |= {("exec", 0), ("exec", 1)}
        elif op.startswith("s_load") or op.startswith("s_buffer_load") or op in ("s_memtime", "s_memrealtime"):
            self.kind = "smem"; self.wr = set(R[0]); self.rd = set().union(*R[1:]) if len(R) > 1 else set()
        elif op.startswith("s_"):
            if op == "s_waitcnt": self.kind = "wait"
            elif op == "s_barrier": self.kind = "barrier"
            elif op == "s_nop": self.kind = "nop"; self.nop = int(ops[0], 0)
            elif op == "s_branch" or op.startswith("s_cbranch"):
                self.kind = "branch"; self.target = ops[0]
                if "scc" in op: self.rd = {("scc", 0)}
                if "vcc" in op: self.rd = {("vcc", 0), ("vcc", 1)}
                if "exec" in op: self.rd = {("exec", 0), ("exec", 1)}
            elif op == "s_endpgm": self.kind = "end"
            else:
                self.kind = "salu"
                if any(op.startswith(p) for p in NO_DST_S):
                    self.rd = set().union(*R) if R else set()
                elif op.startswith("s_getreg"):
                    self.wr = set(R[0])
                elif "saveexec" in op:
                    self.wr = R[0] | {("exec", 0), ("exec", 1)}; self.rd = set().union(*R[1:]) | {("exec", 0), ("exec", 1)}
                else:
                    self.wr = set(R[0]); self.rd = set().union(*R[1:]) if len(R) > 1 else set()
                    if op.startswith("s_addk") or op.startswith("s_mulk") or op.startswith("s_cmov"): self.rd |= R[0]
                if any(op.startswith(p) for p in SCC_WR) or "saveexec" in op: self.wr |= {("scc", 0)}
                if op.startswith("s_cselect") or op.startswith("s_addc") or op.startswith("s_subb") or op.startswith("s_cmov"): self.rd |= {("scc", 0)}
        else:
            raise ValueError("unknown instr: " + text)
    def states(self):
        if self.kind in ("label", "dir"): return 0
        if self.kind == "nop": return self.nop + 1
        return 1
    def is_valu(self): return self.kind in ("valu", "trans")
    def __repr__(self): return self.text

class Asm:
    def __init__(self): self.code = []
    def i(self, text, tag=None, note=None):
        x = I(text, tag, note); self.code.append(x); return x
    def __call__(self, text, tag=None): return self.i(text, tag)
    def lines(self, text):
        for l in text.strip().splitlines():
            l = l.split(";")[0].strip() if not l.strip().startswith(";") else l.strip()
            if l: self.i(l)
    def label(self, name): self.i(name + ":")
    def comment(self, t): self.i("; " + t)
    def extend(self, lst): self.code.extend(lst)
    def text(self):
        out = []
        for x in self.code:
            if x.kind == "label": out.append(x.text)
            else: out.append("    " + x.text)
        return "\n".join(out) + "\n"

def only(regs, kinds): return {r for r in regs if r[0] in kinds}

def required_states(p, c):
    need = 0
    pv = only(p.wr, "va");
    if p.kind == "mfma":
        P = p.passes
        idx = {2: 0, 4: 1, 8: 2, 16: 3}[P]
        if c.kind == "mfma":
            if pv & c.srcAB: need = max(need, [5, 8, 12, 20][idx])
            if pv & c.srcC:
                if c.srcC == pv and c.passes == P: need = max(need, [2, 0, 0, 0][idx])
                else: need = max(need, [4, 6, 10, 18][idx])
            elif pv & c.wr: need = max(need, [4, 6, 10, 18][idx])
        elif c.kind in ("valu", "trans"):
            if pv & (c.rd | c.wr): need = max(need, [5, 8, 12, 20][idx])
            if p.srcC & c.wr: need = max(need, [1, 3, 7, 15][idx])
        elif c.kind in ("ds", "vmem"):
            if pv & (c.rd | c.wr): need = max(need, [5, 8, 12, 20][idx])
    if p.is_valu():
        if c.kind == "mfma" and pv & c.rd: need = max(need, 2)
        if p.kind == "trans" and c.is_valu() and c.kind != "trans" and pv & c.rd: need = max(need, 1)
        if p.kind == "trans" and c.kind in ("trans",) and pv & c.rd: need = max(need, 1)
        ps = only(p.wr, ("s", "vcc"))
        ps = {r for r in p.wr if r[0] in ("s", "vcc")}
        if ps:
            if c.kind == "vmem" and ps & c.rd: need = max(need, 5)
            if c.is_valu() and ps & c.rd:
                need = max(need, 4 if c.op.startswith(("v_readlane", "v_writelane")) else 2)
            if c.kind in ("salu", "branch", "smem") and ps & c.rd: need = max(need, 4 if c.kind != "branch" else 5)
        if c.is_valu() and pv & c.rd:
            if c.op.startswith(("v_readlane", "v_readfirstlane")): need = max(need, 1)
            if c.op.startswith("v_permlane"): need = max(need, 2)
            if c.note and "DPP" in c.note: need = max(need, 2)
        if ("exec", 0) in p.wr or ("exec", 1) in p.wr:
            if c.kind == "mfma": need = max(need, 4)
            if c.is_valu(): need = max(need, 5)
    if p.kind == "salu" and ("m0", 0) in p.wr and c.kind in ("vmem", "ds") and ("m0", 0) in c.rd: need = max(need, 1)
    if p.kind == "salu" and any(r[0] == "exec" for r in p.wr) and c.kind == "mfma": need = max(need, 1)
    if p.kind == "vmem" and p.note and "STORE" in p.note and ("x4" in p.op or "x3" in p.op):
        data = regs_of(p.ops[0] if p.op.startswith("buffer") else p.ops[1])
        if data & c.wr: need = max(need, 2)
    if p.kind == "ds" and p.op.startswith("ds_write") and ("b128" in p.op or "b96" in p.op):
        data = set().union(*[regs_of(o) for o in p.ops[1:]])
        if data & c.wr and c.is_valu(): need = max(need, 2)
    return need

def check_hazards(trace, fix=False, window=24):
    out = []; problems = []
    for c in trace:
        if c.kind in ("label", "dir"):
            out.append(c); continue
        dist = 0; worst = 0; who = None
        for p in reversed(out[-(window * 3):]):
            if p.kind in ("label", "dir"): continue
            need = required_states(p, c)
            if need > dist and need - dist > worst: worst = need - dist; who = p
            dist += p.states()
            if dist >= 21: break
        if worst > 0:
            problems.append((who.text, c.text, worst))
            if fix:
                n = worst
                while n > 0:
                    k = min(n, 16); out.append(I("s_nop %d" % (k - 1))); n -= k
        out.append(c)
    return (out if fix else None), problems

def parse_wait(x):
    t = x.text
    vm = re.search(r"vmcnt\((\d+)\)", t); lg = re.search(r"lgkmcnt\((\d+)\)", t)
    return (int(vm.group(1)) if vm else None, int(lg.group(1)) if lg else None)

def check_waits(trace, verbose=False):
    errs = []
    vm = deque(); lg = deque()
    landed = {}
    dma_total = {}; dma_done = {}; dma_visible = set()
    rd_out = {}
    reads_pending = {}
    reads_done_nobar = set()
    region_last_read = {}
    for k, x in enumerate(trace):
        if x.kind in ("label", "dir"): continue
        touched = only(x.rd | x.wr, "vas")
        for q, nm in ((vm, "vm"), (lg, "lgkm")):
            for e in q:
                if e["dst"] & touched and not (x.kind == "wait"):
                    errs.append("%s pending dst touched by '%s' (#%d) <- '%s'" % (nm, x.text, k, e["i"].text))
        if x.kind == "wait":
            a_, b_ = parse_wait(x)
            if a_ is not None:
                while len(vm) > a_:
                    e = vm.popleft()
                    t = e["i"].tag
                    if t and t[0] == "dma":
                        key = (t[1], t[2]); dma_done[key] = dma_done.get(key, 0) + 1
                        if str(t[1]).startswith("p_") and dma_done[key] == dma_total[key]: dma_visible.add(key)
            if b_ is not None:
                if any(e["i"].kind == "smem" for e in lg) and b_ != 0 and len(lg) > b_:
                    pass
                if any(e["i"].kind == "smem" for e in lg):
                    if b_ == 0:
                        while lg: e = lg.popleft(); _rd_done(e, reads_pending, reads_done_nobar)
                else:
                    while len(lg) > b_:
                        e = lg.popleft(); _rd_done(e, reads_pending, reads_done_nobar)
        elif x.kind == "barrier":
            for key in list(dma_total):
                if dma_done.get(key, 0) == dma_total[key]: dma_visible.add(key)
            reads_done_nobar.clear()
        elif x.kind == "vmem":
            t = x.tag
            if t and t[0] == "dma":
                key = (t[1], t[2])
                if key in dma_visible: errs.append("DMA into %s after it was already visible: %s" % (key, x.text))
                for (r, g), n in reads_pending.items():
                    if r == t[1] and g != t[2] and n > 0: errs.append("DMA %s while reads of gen %s pending: %s #%d" % (key, g, x.text, k))
                for (r, g) in reads_done_nobar:
                    if r == t[1] and g != t[2] and not str(r).startswith("p_"): errs.append("DMA %s w/o barrier after reads of gen %s: %s #%d" % (key, g, x.text, k))
                dma_total[key] = dma_total.get(key, 0) + 1
            vm.append({"i": x, "dst": only(x.wr, "vas")})
            if len(vm) > 63: errs.append("vmcnt overflow (>63) at #%d %s" % (k, x.text))
        elif x.kind in ("ds", "smem"):
            t = x.tag
            if t and t[0] == "rd":
                key = (t[1], t[2])
                if key not in dma_visible and not (len(t) > 3 and t[3] == "nochk"):
                    errs.append("ds_read of %s before DMA visible: %s #%d (done %s/%s)" % (key, x.text, k, dma_done.get(key), dma_total.get(key)))
                reads_pending[key] = reads_pending.get(key, 0) + 1
            lg.append({"i": x, "dst": only(x.wr, "vas")})
            if x.kind == "ds" and len(lg) > 15 + 0 and verbose: pass
    return errs

def _rd_done(e, reads_pending, reads_done_nobar):
    t = e["i"].tag
    if t and t[0] == "rd":
        key = (t[1], t[2]); reads_pending[key] -= 1; reads_done_nobar.add(key)

def make_trace(code, decisions=None, start=None, maxlen=2000000):
    decisions = {k: list(vv) for k, vv in (decisions or {}).items()}
    labels = {x.label: k for k, x in enumerate(code) if x.kind == "label"}
    pc = labels[start] if start else 0
    out = []
    while pc < len(code) and len(out) < maxlen:
        x = code[pc]; out.append(x)
        if x.kind == "end": break
        if x.kind == "branch":
            if x.op == "s_branch": pc = labels[x.target]; continue
            d = decisions.get(x.target)
            take = d.pop(0) if d else False
            if take: pc = labels[x.target]; continue
        pc += 1
    return out

def kernel_block(name, vgprs, accum, sgprs=102, wg_y=False):
    t = '.section .rodata,"a"\n.p2align 6\n.amdhsa_kernel %s\n' % name
    t += "  .amdhsa_next_free_vgpr %d\n  .amdhsa_next_free_sgpr %d\n  .amdhsa_accum_offset %d\n" % (vgprs, sgprs, accum)
    t += "  .amdhsa_group_segment_fixed_size 0\n  .amdhsa_kernarg_size 88\n  .amdhsa_user_sgpr_count 2\n"
    t += "  .amdhsa_user_sgpr_kernarg_segment_ptr 1\n  .amdhsa_system_sgpr_workgroup_id_x 1\n"
    if wg_y: t += "  .amdhsa_system_sgpr_workgroup_id_y 1\n"
    t += "  .amdhsa_float_denorm_mode_32 3\n"
    t += ".end_amdhsa_kernel\n.text\n"
    return t

def kernel_head(name):
    return ".globl %s\n.p2align 8\n.type %s,@function\n%s:\n" % (name, name, name)
```

```python
import sys
sys.path.insert(0, "k")
from common import *
from k0 import gen_k0
from k2 import K2
from k3 import K3
def gen_all(k2_kw=None, k3_kw=None, launches=("k0","k2","k3")):
    hdr = "; LN -> (Q proj + FFN1 + flash attention) -> (O proj + FFN2 + gate), gfx950\n"
    L = {"k0": "; @launch kernel=ln_kernel grid=(256,1,1) block=(256,1,1) lds=0\n",
         "k2": "; @launch kernel=attn_kernel grid=(256,1,1) block=(256,1,1) lds=163840\n",
         "k3": "; @launch kernel=out_kernel grid=(256,1,1) block=(256,1,1) lds=131072\n"}
    for l in launches: hdr += L[l]
    hdr += '.amdgcn_target "amdgcn-amd-amdhsa--gfx950"\n.text\n'
    k2 = K2(**(k2_kw or {})); k3 = K3(**(k3_kw or {}))
    t = hdr + gen_k0() + k2.gen() + k3.gen()
    return t, k2, k3
if __name__ == "__main__":
    out = sys.argv[1] if len(sys.argv) > 1 else "full.s"
    import os; os.makedirs(os.path.dirname(out), exist_ok=True)
    t, k2, k3 = gen_all()
    open(out, "w").write(t)
    print("wrote", out, len(t), "bytes")
```

```python
import sys
sys.path.insert(0, "lib")
from gen import *
KN = "recurrent_scan__mha_block_cached__dense_activation_silu__prompt_kernel"
WS_XN = 0x0
XN_BYTES = 128*16*1024
WS_H = 0x200000
H_BYTES = 128*56*1024
WS_O = 0x1000000
O_BYTES = 128*128*1024
WS_W3 = 0xA00000
W3_BYTES = 8*184*4096
WS_DBG = 0x2000000

class VM:
    def __init__(self, A): self.A = A; self.ops = []; self.done = 0
    def issue(self, text, label, tag=None):
        self.ops.append(label);
        assert len(self.ops) - self.done <= 63, "vmcnt overflow at %s" % text
        return self.A.i(text, tag)
    def outstanding(self): return len(self.ops) - self.done
    def count_for(self, pred):
        last = -1
        for k in range(len(self.ops)-1, self.done-1, -1):
            if pred(self.ops[k]): last = k; break
        if last < 0: return None
        return len(self.ops) - 1 - last
    def wait(self, pred, extra=""):
        n = self.count_for(pred)
        if n is None:
            if extra: self.A("s_waitcnt " + extra)
            return
        self.done = len(self.ops) - n
        self.A("s_waitcnt vmcnt(%d)%s" % (n, (" " + extra) if extra else ""))
    def wait_all(self, extra=""):
        self.done = len(self.ops)
        self.A("s_waitcnt vmcnt(0)" + ((" " + extra) if extra else ""))

class LG:
    def __init__(self, A): self.A = A; self.ops = []; self.done = 0
    def issue(self, text, label, tag=None):
        self.ops.append(label); return self.A.i(text, tag)
    def count_for(self, pred):
        for k in range(len(self.ops)-1, self.done-1, -1):
            if pred(self.ops[k]): return len(self.ops) - 1 - k
        return None
    def wait(self, pred):
        n = self.count_for(pred)
        if n is None: return
        n = min(n, 15)
        self.done = len(self.ops) - n
        self.A("s_waitcnt lgkmcnt(%d)" % n)
    def reset(self): self.done = len(self.ops)

def srd(A, q, lo, hi, nbytes, off=None):
    if off is None:
        A("s_mov_b32 s%d, s%d" % (q, lo)); A("s_mov_b32 s%d, s%d" % (q+1, hi))
    else:
        A("s_add_u32 s%d, s%d, %s" % (q, lo, off)); A("s_addc_u32 s%d, s%d, 0" % (q+1, hi))
    if isinstance(nbytes, int): A("s_mov_b32 s%d, 0x%x" % (q+2, nbytes))
    else: A(nbytes % (q+2))
    A("s_mov_b32 s%d, 0x00020000" % (q+3))

def f32bits(x):
    import struct
    return struct.unpack("<I", struct.pack("<f", x))[0]
def lit(x): return "0x%08x" % f32bits(x)

def finalize(code, verbose=True, name=""):
    fixed, probs = check_hazards(code, fix=True)
    if verbose and probs:
        print("[%s] inserted nops for %d hazards" % (name, len(probs)))
        if verbose == 2:
            for p in probs[:40]: print("   ", p)
    B = Asm(); B.code = fixed
    return B

class Prof:
    def __init__(self, A, kid, base=64, on=True): self.A = A; self.kid = kid; self.base = base; self.n = 0; self.on = on; self.names = []
    def stamp(self, name=""):
        if not self.on: return
        b = self.base + 4*self.n; self.n += 1; self.names.append(name)
        assert b + 3 < 100
        self.A("s_memtime s[%d:%d]" % (b, b+1)); self.A("s_memrealtime s[%d:%d]" % (b+2, b+3))
    def dump(self, ws_lo, ws_hi, sblk, swave, vt, q):
        if not self.on: return
        A = self.A
        A("s_waitcnt vmcnt(0) lgkmcnt(0)")
        A("s_add_u32 s%d, s%d, 0x%x" % (q, ws_lo, WS_DBG + self.kid*0x100000)); A("s_addc_u32 s%d, s%d, 0" % (q+1, ws_hi))
        A("s_mov_b32 s%d, 0x100000" % (q+2)); A("s_mov_b32 s%d, 0x00020000" % (q+3))
        A("s_lshl_b32 s3, %s, 2" % sblk)
        if swave: A("s_add_u32 s3, s3, %s" % swave)
        A("s_lshl_b32 s3, s3, 8")
        A("v_mov_b32 v%d, s3" % vt)
        for i in range(self.n):
            b = self.base + 4*i
            for j, r in enumerate((b, b+1, b+2, b+3)):
                A("v_mov_b32 v%d, s%d" % (vt+1, r))
                A("buffer_store_dword v%d, v%d, s[%d:%d], 0 offen offset:%d" % (vt+1, vt, q, q+3, i*16+j*4))
                A("s_nop 1")
        A("s_waitcnt vmcnt(0)")
```

```python
from common import *
def gen_k0(name="ln_kernel", prof=False):
    A = Asm()
    P = Prof(A, 0, on=prof)
    P.stamp("start")
    A.lines("""
s_cmp_ge_u32 s2, 256
s_cbranch_scc1 L0_end
s_load_dwordx2 s[4:5], s[0:1], 0
s_load_dwordx2 s[6:7], s[0:1], 80
v_and_b32 v1, 1, v0
v_lshrrev_b32 v2, 6, v0
v_and_b32 v3, 63, v0
v_lshrrev_b32 v3, 1, v3
s_lshl_b32 s3, s2, 3
v_lshl_add_u32 v4, v2, 1, v1
v_add_u32 v4, s3, v4
v_lshlrev_b32 v5, 10, v4
v_lshl_add_u32 v5, v3, 4, v5
s_waitcnt lgkmcnt(0)
""")
    srd(A, 8, 4, 5, 2048*1024)
    srd(A, 12, 6, 7, XN_BYTES)
    A("buffer_load_dwordx4 v[8:11], v5, s[8:11], 0 offen")
    A("buffer_load_dwordx4 v[12:15], v5, s[8:11], 0 offen offset:512")
    A.lines("""
v_lshrrev_b32 v6, 4, v4
v_lshlrev_b32 v6, 14, v6
v_lshrrev_b32 v7, 2, v3
v_lshl_add_u32 v6, v7, 10, v6
v_and_b32 v7, 3, v3
v_lshl_add_u32 v6, v7, 8, v6
v_and_b32 v7, 15, v4
v_lshl_add_u32 v6, v7, 4, v6
s_waitcnt vmcnt(0)
""")
    X = 16
    for i in range(8):
        A("v_lshlrev_b32 v%d, 16, v%d" % (X+2*i, 8+i))
        A("v_and_b32 v%d, 0xffff0000, v%d" % (X+2*i+1, 8+i))
    for i in range(8): A("v_add_f32 v%d, v%d, v%d" % (32+i, X+i, X+8+i))
    for i in range(4): A("v_add_f32 v%d, v%d, v%d" % (32+i, 32+i, 36+i))
    for i in range(2): A("v_add_f32 v%d, v%d, v%d" % (32+i, 32+i, 34+i))
    A("v_add_f32 v32, v32, v33")
    def allreduce(r, t):
        for k in (2, 4, 8):
            A("v_add_f32_dpp v%d, v%d, v%d row_ror:%d row_mask:0xf bank_mask:0xf" % (r, r, r, k))
        A("v_mov_b32 v%d, v%d" % (t, r))
        A("v_permlane16_swap_b32 v%d, v%d" % (r, t))
        A("v_add_f32 v%d, v%d, v%d" % (r, r, t))
        A("v_mov_b32 v%d, v%d" % (t, r))
        A("v_permlane32_swap_b32 v%d, v%d" % (r, t))
        A("v_add_f32 v%d, v%d, v%d" % (r, r, t))
    allreduce(32, 33)
    A("v_mul_f32 v40, %s, v32" % lit(1.0/512))
    A("v_cvt_pk_bf16_f32 v41, v40, v40")
    A("v_and_b32 v41, 0xffff0000, v41")
    for i in range(16): A("v_sub_f32 v%d, v%d, v40" % (44+i, X+i))
    A("v_mul_f32 v32, v44, v44")
    A("v_mul_f32 v33, v45, v45")
    for i in range(2, 16): A("v_fmac_f32 v%d, v%d, v%d" % (32+(i & 1), 44+i, 44+i))
    A("v_add_f32 v32, v32, v33")
    allreduce(32, 33)
    A.lines("""
v_mul_f32 v32, %s, v32
v_cvt_pk_bf16_f32 v32, v32, v32
v_and_b32 v32, 0xffff0000, v32
v_add_f32 v32, %s, v32
v_cvt_pk_bf16_f32 v32, v32, v32
v_and_b32 v32, 0xffff0000, v32
v_sqrt_f32 v32, v32
s_nop 0
v_cvt_pk_bf16_f32 v32, v32, v32
v_and_b32 v32, 0xffff0000, v32
v_rcp_f32 v33, v32
""" % (lit(1.0/512), lit(1e-5)))
    for i in range(16): A("v_sub_f32 v%d, v%d, v41" % (44+i, X+i))
    for i in range(8): A("v_cvt_pk_bf16_f32 v%d, v%d, v%d" % (8+i, 44+2*i, 45+2*i))
    for i in range(8):
        A("v_lshlrev_b32 v%d, 16, v%d" % (44+2*i, 8+i))
        A("v_and_b32 v%d, 0xffff0000, v%d" % (45+2*i, 8+i))
    for i in range(16): A("v_mul_f32 v%d, v%d, v33" % (X+i, 44+i))
    for i in range(16): A("v_fma_f32 v%d, -v%d, v32, v%d" % (44+i, X+i, 44+i))
    for i in range(16): A("v_fmac_f32 v%d, v%d, v33" % (X+i, 44+i))
    for i in range(8): A("v_cvt_pk_bf16_f32 v%d, v%d, v%d" % (8+i, X+2*i, X+2*i+1))
    A("s_movk_i32 s3, 0x2000")
    A("buffer_store_dwordx4 v[8:11], v6, s[12:15], 0 offen")
    A("buffer_store_dwordx4 v[12:15], v6, s[12:15], s3 offen")
    if prof:
        A("v_readfirstlane_b32 s20, v2")
        P.stamp("end")
        P.dump(6, 7, "s2", "s20", 40, 24)
    A.label("L0_end")
    A("s_endpgm")
    B = finalize(A.code, name="k0")
    return kernel_head(name) + B.text() + kernel_block(name, 64, 64, sgprs=102 if prof else 32)
if __name__ == "__main__":
    print(gen_k0())
```

```python
from common import *
import math
sK, sV, sWQ, sW1, sXN, sH, sO = 8, 12, 16, 20, 24, 28, 32
sHEAD, sQT, sW, sW2K, sW1K = 42, 43, 44, 45, 46
sKo, sVo, sCNT, sFLAG, sT0, sT1, sT2 = 47, 48, 49, 50, 51, 52, 53
sHOFF, sOOFF = 54, 55
sWO, sW2, sW3 = 60, 64, 68
sCL, sCS, sC2L, sC2S = 4, 5, 56, 58
sQS = 6
vQ = 0
vS = 64
vP = 128
vNM = 160
vL = 176
vWf = 128
vKr = 180
vVr = 184
vKd = 192
vVd = 194
vWr = 196
vWrF = 200
vWdQ = 204
vWdF = 206
vX = 207
vLane = 211
vT = 212
vCA = 244
aO = 0; aK = 128; aV = 160
aX = 0
aF = 192
LDS_K = 0; LDS_V = 65536; LDS_C = 131072
LDS_W = 90112; WSLOT = 12288; NWS = 6
QSCALE = math.log2(math.e) / math.sqrt(128.0)

def mfma(d, a_, b_, c): return "v_mfma_f32_16x16x32_bf16 %s, %s, %s, %s" % (d, a_, b_, c)

class K2:
    def __init__(self, dbg=None, name="attn_kernel", prof=False):
        self.A = Asm(); self.vm = VM(self.A); self.lg = LG(self.A); self.dbg = dbg; self.name = name
        self.prof = Prof(self.A, 1, base=76, on=prof)
    def setup(self):
        A = self.A
        A.lines("""
s_cmp_ge_u32 s2, 256
s_cbranch_scc1 L2_end
s_load_dwordx4 s[4:7], s[0:1], 8
s_load_dwordx2 s[36:37], s[0:1], 24
s_load_dwordx2 s[38:39], s[0:1], 48
s_load_dwordx2 s[72:73], s[0:1], 32
s_load_dwordx2 s[74:75], s[0:1], 56
s_load_dwordx2 s[40:41], s[0:1], 80
v_lshrrev_b32 v%(t0)d, 6, v0
v_and_b32 v%(t1)d, 63, v0
s_and_b32 s%(head)d, s2, 7
s_lshl_b32 s%(head)d, s%(head)d, 2
s_lshr_b32 s3, s2, 3
s_and_b32 s3, s3, 3
s_add_u32 s%(head)d, s%(head)d, s3
s_lshr_b32 s%(qt)d, s2, 5
v_readfirstlane_b32 s%(w)d, v%(t0)d
""" % dict(t0=vT, t1=vT+1, head=sHEAD, qt=sQT, w=sW))
        ln = vT+1; g = vT+2; c = vT+3; r = vT+4; cc = vT+5; t = vT+6; u = vT+7; x = vT+8
        A("v_lshrrev_b32 v%d, 4, v%d" % (g, ln))
        A("v_and_b32 v%d, 15, v%d" % (c, ln))
        A("v_lshrrev_b32 v%d, 2, v%d" % (r, c))
        A("v_and_b32 v%d, 3, v%d" % (cc, ln))
        A("v_lshlrev_b32 v%d, 4, v%d" % (vLane, ln))
        A("s_lshl_b32 s%d, s%d, 11" % (sW2K, sW))
        A("s_lshl_b32 s%d, s%d, 10" % (sW1K, sW))
        for ks in range(4):
            A("v_add_u32 v%d, %d, v%d" % (t, 4*ks, g))
            A("v_xor_b32 v%d, v%d, v%d" % (t, t, c))
            A("v_lshlrev_b32 v%d, 4, v%d" % (t, t))
            A("v_lshl_add_u32 v%d, v%d, 8, v%d" % (vKr+ks, c, t))
        A("v_lshl_add_u32 v%d, v%d, 2, v%d" % (u, g, r))
        A("v_and_b32 v%d, 7, v%d" % (x, u))
        A("v_lshlrev_b32 v%d, 8, v%d" % (u, u))
        A("v_lshl_add_u32 v%d, v%d, 3, v%d" % (u, cc, u))
        A("v_add_u32 v%d, 0x%x, v%d" % (u, LDS_V, u))
        for dt in range(8):
            A("v_xor_b32 v%d, %d, v%d" % (t, dt, x))
            A("v_lshl_add_u32 v%d, v%d, 5, v%d" % (vVr+dt, t, u))
        A("v_mov_b32 v%d, s%d" % (u, sW))
        A("v_lshl_add_u32 v%d, v%d, 3, v%d" % (u, u, g))
        for p in range(2):
            A("v_add_u32 v%d, %d, v%d" % (t, 4*p, u))
            A("v_and_b32 v%d, 15, v%d" % (t, t))
            A("v_xor_b32 v%d, v%d, v%d" % (t, t, c))
            A("v_lshlrev_b32 v%d, 4, v%d" % (t, t))
            A("v_lshl_add_u32 v%d, v%d, 8, v%d" % (vKd+p, u, t))
            A("v_add_u32 v%d, %d, v%d" % (t, 4*p, g))
            A("v_lshlrev_b32 v%d, 1, v%d" % (t, t))
            A("v_xor_b32 v%d, v%d, v%d" % (t, t, c))
            A("v_lshlrev_b32 v%d, 4, v%d" % (t, t))
            A("v_lshl_add_u32 v%d, v%d, 8, v%d" % (vVd+p, u, t))
        A("v_and_b32 v%d, 1, v%d" % (t, r))
        A("v_and_b32 v%d, 1, v%d" % (x, g))
        A("v_lshl_add_u32 v%d, v%d, 1, v%d" % (x, x, t))
        A("v_lshl_add_u32 v%d, v%d, 3, v%d" % (u, g, r))
        A("v_lshlrev_b32 v%d, 8, v%d" % (u, u))
        A("v_lshl_add_u32 v%d, v%d, 4, v%d" % (u, cc, u))
        A("v_add_u32 v%d, 0x%x, v%d" % (u, LDS_W, u))
        for ks in range(4):
            A("v_xor_b32 v%d, %d, v%d" % (t, ks, x))
            A("v_lshl_add_u32 v%d, v%d, 6, v%d" % (vWr+ks, t, u))
        A("v_lshrrev_b32 v%d, 1, v%d" % (t, r))
        A("v_and_b32 v%d, 1, v%d" % (x, g))
        A("v_lshl_add_u32 v%d, v%d, 1, v%d" % (x, x, t))
        A("v_lshl_add_u32 v%d, v%d, 3, v%d" % (u, g, r))
        A("v_lshlrev_b32 v%d, 7, v%d" % (u, u))
        A("v_lshl_add_u32 v%d, v%d, 3, v%d" % (u, cc, u))
        A("v_add_u32 v%d, 0x%x, v%d" % (u, LDS_W + 8192, u))
        for tau in range(4):
            A("v_xor_b32 v%d, %d, v%d" % (t, tau, x))
            A("v_lshl_add_u32 v%d, v%d, 5, v%d" % (vWrF+tau, t, u))
        A("s_and_b32 s3, s%d, 1" % sW)
        A("s_lshl_b32 s3, s3, 1")
        A("v_and_b32 v%d, 1, v%d" % (x, g))
        A("v_or_b32 v%d, s3, v%d" % (x, x))
        A("v_lshlrev_b32 v%d, 2, v%d" % (t, x))
        A("v_xor_b32 v%d, v%d, v%d" % (t, t, c))
        A("v_lshlrev_b32 v%d, 4, v%d" % (t, t))
        A("s_lshl_b32 s%d, s%d, 3" % (sT0, sW))
        A("v_add_u32 v%d, s%d, v%d" % (u, sT0, g))
        A("v_lshl_add_u32 v%d, v%d, 13, v%d" % (vWdQ, u, t))
        A("v_add_u32 v%d, %d, v%d" % (vWdQ+1, 4*8192 - 1024, vWdQ))
        A("v_lshrrev_b32 v%d, 3, v%d" % (u, ln))
        A("v_lshlrev_b32 v%d, 1, v%d" % (x, x))
        A("v_and_b32 v%d, 7, v%d" % (t, ln))
        A("v_xor_b32 v%d, v%d, v%d" % (t, t, x))
        A("v_lshlrev_b32 v%d, 4, v%d" % (t, t))
        A("v_add_u32 v%d, s%d, v%d" % (u, sT0, u))
        A("v_mul_u32_u24 v%d, 3584, v%d" % (u, u))
        A("v_add_u32 v%d, v%d, v%d" % (vWdF, u, t))
        A("v_lshrrev_b32 v%d, 3, v%d" % (u, ln))
        A("v_mul_u32_u24 v%d, %d, v%d" % (u, 184*4096, u))
        A("v_and_b32 v%d, 7, v%d" % (x, ln))
        A("s_lshl_b32 s%d, s%d, 1" % (sT0, sW))
        for jj in range(2):
            A("s_add_u32 s3, s%d, %d" % (sT0, jj)); A("s_and_b32 s3, s3, 3"); A("s_lshl_b32 s3, s3, 1")
            A("v_xor_b32 v%d, s3, v%d" % (t, x))
            A("v_lshl_add_u32 v%d, v%d, 4, v%d" % (vCA+jj, t, u))
        A("s_mul_i32 s%d, s2, 7" % sT1)
        A("s_add_u32 s%d, s%d, s%d" % (sT1, sT1, sT0))
        for jj in range(2):
            A("s_add_u32 s3, s%d, %d" % (sT1, jj)); A("s_min_u32 s3, s3, 1791")
            A("s_lshl_b32 s%d, s3, 10" % (sC2L+jj))
            A("s_lshr_b32 s%d, s3, 5" % sT2); A("s_add_u32 s%d, s%d, 128" % (sT2, sT2)); A("s_lshl_b32 s%d, s%d, 12" % (sT2, sT2))
            A("s_and_b32 s%d, s3, 31" % sT0); A("s_lshl_b32 s%d, s%d, 7" % (sT0, sT0))
            A("s_add_u32 s%d, s%d, s%d" % (sC2S+jj, sT2, sT0))
            A("s_lshr_b32 s3, s3, 1"); A("s_and_b32 s3, s3, 3"); A("s_lshl_b32 s3, s3, 1")
            A("v_xor_b32 v%d, s3, v%d" % (t, x))
            A("v_lshl_add_u32 v%d, v%d, 4, v%d" % (vCA+2+jj, t, u))
        A("s_lshl_b32 s3, s%d, 4" % sQT)
        A("s_lshl_b32 s%d, s%d, 2" % (sT0, sW))
        A("s_add_u32 s3, s3, s%d" % sT0)
        A("s_mul_i32 s%d, s3, %d" % (sHOFF, 56*1024))
        A("s_lshl_b32 s%d, s3, 17" % sOOFF)
        A("s_lshl_b32 s3, s3, 14")
        for qs in range(4):
            A("v_add_u32 v%d, s3, v%d" % (vX+qs, vLane))
            if qs < 3: A("s_add_u32 s3, s3, 16384")
        A("s_waitcnt lgkmcnt(0)")
        A("s_lshl_b32 s3, s%d, 19" % sHEAD)
        srd(A, sK, 4, 5, 524288, "s3")
        srd(A, sV, 6, 7, 524288, "s3")
        A("s_lshl_b32 s3, s%d, 8" % sHEAD)
        srd(A, sWQ, 36, 37, "s_sub_u32 s%d, 0x400000, s3", "s3")
        A("s_min_u32 s3, s%d, 27" % sHEAD)
        A("s_lshl_b32 s3, s3, 7")
        srd(A, sW1, 38, 39, "s_sub_u32 s%d, " + str(512*3584) + ", s3", "s3")
        srd(A, sXN, 40, 41, XN_BYTES)
        srd(A, sH, 40, 41, H_BYTES, "0x%x" % WS_H)
        A("s_cmp_ge_u32 s%d, 28" % sHEAD)
        A("s_cselect_b32 s%d, 0, s%d" % (sH+2, sH+2))
        srd(A, sO, 40, 41, O_BYTES, "0x%x" % WS_O)
        srd(A, sWO, 72, 73, 4096*1024)
        srd(A, sW2, 74, 75, 1792*1024)
        srd(A, sW3, 40, 41, W3_BYTES, "0x%x" % WS_W3)
        A("s_lshl_b32 s3, s2, 4")
        A("s_lshl_b32 s%d, s%d, 2" % (sT0, sW))
        A("s_add_u32 s3, s3, s%d" % sT0)
        A("s_lshl_b32 s%d, s3, 10" % sCL)
        A("s_lshr_b32 s%d, s3, 5" % sT0); A("s_lshl_b32 s%d, s%d, 12" % (sT0, sT0))
        A("s_and_b32 s3, s3, 31"); A("s_lshl_b32 s3, s3, 7")
        A("s_add_u32 s%d, s%d, s3" % (sCS, sT0))
        A("s_mov_b32 s%d, %s" % (sQS, lit(QSCALE))); A("s_mov_b32 s%d, %s" % (sQS+1, lit(QSCALE)))
        A("s_mov_b32 s%d, 0" % sFLAG)
    def w_ops(self, k):
        A = self.A; slot = k % NWS; base = LDS_W + slot*WSLOT
        def q0():
            A("s_add_u32 m0, s%d, 0x%x" % (sW2K, base)); A("s_mov_b32 s%d, 0x%x" % (sT0, k*32*8192))
            self.vm.issue("buffer_load_dwordx4 v%d, s[%d:%d], s%d offen lds" % (vWdQ, sWQ, sWQ+3, sT0), ('W', k), ('dma', 'W%d' % slot, k))
            self.vm.issue("buffer_load_dwordx4 v%d, s[%d:%d], s%d offen offset:1024 lds" % (vWdQ+1, sWQ, sWQ+3, sT0), ('W', k), ('dma', 'W%d' % slot, k))
        def f0():
            A("s_add_u32 m0, s%d, 0x%x" % (sW1K, base + 8192)); A("s_mov_b32 s%d, 0x%x" % (sT0, k*32*3584))
            self.vm.issue("buffer_load_dwordx4 v%d, s[%d:%d], s%d offen lds" % (vWdF, sW1, sW1+3, sT0), ('W', k), ('dma', 'W%d' % slot, k))
        return [q0, f0]
    def x_ops(self, k):
        A = self.A; out = []
        for qs in range(4):
            def f(qs=qs):
                if qs == 0: A("s_mov_b32 s%d, %d" % (sT1, (k >> 2)*4096))
                self.vm.issue("buffer_load_dwordx4 %s, v%d, s[%d:%d], s%d offen offset:%d" % (a(aX + (k % 8)*16 + qs*4, 4), vX+qs, sXN, sXN+3, sT1, (k & 3)*1024), ('xn', k))
            out.append(f)
        return out
    def kv_ops(self, kind, unit):
        return [lambda: self.dma_unit(kind, unit, (kind, unit))]
    def copy_loads(self):
        out = []
        for j in range(4):
            out.append(lambda j=j: self.vm.issue("buffer_load_dwordx4 %s, v%d, s[%d:%d], s%d offen offset:%d" % (v(vT+4*j, 4), vLane, sWO, sWO+3, sCL, j*1024), ('cl', j)))
        for j in range(2):
            out.append(lambda j=j: self.vm.issue("buffer_load_dwordx4 %s, v%d, s[%d:%d], s%d offen" % (v(vT+16+4*j, 4), vLane, sW2, sW2+3, sC2L+j), ('cl', 4+j)))
        return out
    def copy_stores(self):
        out = []
        def st(j):
            self.vm.wait(lambda l: l == ('cl', j))
            if j < 4: self.vm.issue("buffer_store_dwordx4 %s, v%d, s[%d:%d], s%d offen offset:%d" % (v(vT+4*j, 4), vCA+(j >> 1), sW3, sW3+3, sCS, j*128), ('cs', j))
            else: self.vm.issue("buffer_store_dwordx4 %s, v%d, s[%d:%d], s%d offen" % (v(vT+4*j, 4), vCA+2+(j-4), sW3, sW3+3, sC2S+(j-4)), ('cs', j))
        for j in range(6): out.append(lambda j=j: st(j))
        return out
    def dma_unit(self, kind, unit, label, soff=None, slot=None):
        A = self.A
        slot = unit % 8 if slot is None else slot
        base, sr, vo = (LDS_K, sK, vKd) if kind == 'K' else (LDS_V, sV, vVd)
        A("s_add_u32 m0, s%d, 0x%x" % (sW2K, base + slot*8192))
        if soff is None:
            A("s_mov_b32 s%d, 0x%x" % (sT0, unit*8192)); so = sT0
        else: so = soff
        self.vm.issue("buffer_load_dwordx4 v%d, s[%d:%d], s%d offen lds" % (vo, sr, sr+3, so), label, ('dma', kind+str(slot), unit))
        self.vm.issue("buffer_load_dwordx4 v%d, s[%d:%d], s%d offen offset:1024 lds" % (vo+1, sr, sr+3, so), label, ('dma', kind+str(slot), unit))
    def w_tile_reads(self, t):
        k, tau = divmod(t, 12); slot = k % NWS
        for hp in range(2):
            if tau < 8: ar, off = vWr + (tau >> 1), slot*WSLOT + hp*1024 + 8*(tau & 1)
            else: ar, off = vWrF + (tau-8), slot*WSLOT + hp*512
            self.lg.issue("ds_read_b64_tr_b16 %s, v%d offset:%d" % (v(vWf+4*tau+2*hp, 2), ar, off), ('Wt', t), ('rd', 'W%d' % slot, k))
    def q_epi_ops(self, ks):
        out = []
        for qs in range(4):
            i = ks*4 + qs
            for j in range(4): out.append("v_pk_mul_f32 %s, %s, s[%d:%d]" % (v(8*i+2*j, 2), v(8*i+2*j, 2), sQS, sQS+1))
            for j in range(4): out.append("v_cvt_pk_bf16_f32 v%d, v%d, v%d" % (4*i+j, 8*i+2*j, 8*i+2*j+1))
        return out
    def f_epilogue(self):
        A = self.A
        nl = -math.log2(math.e)
        A("s_mov_b32 s%d, %s" % (sT2, lit(nl)))
        A("s_lshl_b32 s%d, s%d, 11" % (sT0, sHEAD))
        A("s_add_u32 s%d, s%d, s%d" % (sT0, sT0, sHOFF))
        for qs in range(4):
            for u in range(2):
                Z = vS + ((qs*2+u) & 1)*24; T = Z + 8
                regs = [aF + ((2*u+tt)*4 + qs)*4 + r for tt in range(2) for r in range(4)]
                for i, rg in enumerate(regs): A("v_accvgpr_read_b32 v%d, a%d" % (Z+i, rg))
                for i in range(8): A("v_mul_f32 v%d, s%d, v%d" % (T+i, sT2, Z+i))
                for i in range(8): A("v_exp_f32 v%d, v%d" % (T+i, T+i))
                for i in range(8): A("v_add_f32 v%d, 1.0, v%d" % (T+i, T+i))
                for i in range(8): A("v_rcp_f32 v%d, v%d" % (T+i, T+i))
                for i in range(8): A("v_mul_f32 v%d, v%d, v%d" % (Z+i, Z+i, T+i))
                for i in range(4): A("v_cvt_pk_bf16_f32 v%d, v%d, v%d" % (T+8+i, Z+2*i, Z+2*i+1))
                self.vm.issue("buffer_store_dwordx4 %s, v%d, s[%d:%d], s%d offen offset:%d" % (v(T+8, 4), vLane, sH, sH+3, sT0, u*1024), ('hst',))
            if qs < 3: A("s_add_u32 s%d, s%d, %d" % (sT0, sT0, 56*1024))
    def phase1(self):
        A = self.A; vm = self.vm; lg = self.lg
        LA = 7
        for k in range(2):
            for f in self.w_ops(k): f()
            for f in self.x_ops(k): f()
        vm.wait(lambda l: l == ('W', 0)); A("s_barrier")
        self.prof.stamp("firstW")
        for t in range(LA): self.w_tile_reads(t)
        pre = {k: [] for k in range(16)}; post = {k: [] for k in range(16)}
        def X(j): return self.x_ops(j) if j < 16 else []
        def W(j): return self.w_ops(j) if j < 16 else []
        pre[0] = W(2) + X(2);  post[0] = W(3) + X(3)
        pre[1] = W(4) + X(4);  post[1] = W(5) + X(5)
        for k in range(2, 16):
            pre[k] = X(k+4) if k > 2 else []
            post[k] = W(k+4) if k == 2 else []
        pre[2] = X(6); post[2] = W(6) + W(7)
        for k in range(3, 16):
            pre[k] = X(k+4); post[k] = W(k+5)
        cl = self.copy_loads(); cs = self.copy_stores()
        post[2] += cl[0:2]; post[3] += cl[2:4]; post[4] += cl[4:6]
        kv = [('K', 0), ('K', 1), ('V', 0), ('K', 2), ('K', 3), ('V', 1), ('K', 4), ('K', 5), ('V', 2), ('K', 6), ('K', 7)]
        for i, (kind, unit) in enumerate(kv):
            post[5 + (i*7)//len(kv)] += self.kv_ops(kind, unit)
        post[13] += self.kv_ops('V', 3); post[14] += self.kv_ops('V', 4)
        post[12] += cs[0:2]; post[13] += cs[2:4]; post[14] += cs[4:6]
        self.sched = (pre, post)
        for k in range(16):
            epi = []
            vm.wait(lambda l: l == ('xn', k))
            for tau in range(12):
                t = 12*k + tau
                if tau == 5:
                    if k < 15: vm.wait(lambda l: l == ('W', k+1))
                    if k == 14: vm.wait(lambda l: l[0] in 'KV' and l != ('V', 3) and l != ('V', 4))
                    A("s_barrier")
                lg.wait(lambda l: l == ('Wt', t))
                if tau < 5: items, n0, n = pre[k], tau*4, 20
                else: items, n0, n = post[k], (tau-5)*4, 28
                for qs in range(4):
                    xb = a(aX + (k % 8)*16 + qs*4, 4)
                    if tau < 8:
                        i = (tau >> 1)*4 + qs
                        d = v(8*i + 4*(tau & 1), 4)
                    else: d = a(aF + ((tau-8)*4+qs)*4, 4)
                    A(mfma(d, v(vWf+4*tau, 4), xb, "0" if k == 0 else d))
                    pos = n0 + qs
                    for j, f in enumerate(items):
                        if (j*n)//max(1, len(items)) + (1 if len(items) < n else 0) == pos + (0 if len(items) >= n else 0) or (False): pass
                    for j, f in enumerate(items):
                        if min(n-1, (j*n)//len(items) + 1) == pos: f()
                    if qs == 1 and t + LA < 192: self.w_tile_reads(t + LA)
                    if k == 15:
                        if tau >= 2 and tau % 2 == 0 and qs == 1 and tau <= 8: epi += self.q_epi_ops(tau//2 - 1)
                        for _ in range(3):
                            if epi: A(epi.pop(0))
            while epi: A(epi.pop(0))
        self.prof.stamp("pass")
        if self.dbg == 'q': self.dump_q()
        self.f_epilogue()
        A.label("L2_att")
        self.prof.stamp("att")
    def late_dma(self):
        self.dma_unit('K', 4, ('K', 4)); self.dma_unit('K', 5, ('K', 5))
        self.dma_unit('V', 3, ('V', 3)); self.dma_unit('K', 6, ('K', 6))
        self.dma_unit('V', 4, ('V', 4)); self.dma_unit('K', 7, ('K', 7))
    def dump_q(self):
        A = self.A
        A("s_add_u32 s56, s40, 0x%x" % WS_DBG); A("s_addc_u32 s57, s41, 0"); A("s_mov_b32 s58, 0x1000000"); A("s_mov_b32 s59, 0x00020000")
        A("s_lshl_b32 s3, s2, 2"); A("s_add_u32 s3, s3, s%d" % sW); A("s_lshl_b32 s3, s3, 14")
        for f in range(16):
            self.vm.issue("buffer_store_dwordx4 %s, v%d, s[56:59], s3 offen offset:%d" % (v(vQ+4*f, 4), vLane, (f & 3)*1024), ('dbg',))
            if f & 3 == 3: A("s_add_u32 s3, s3, 4096")
    def k_reads(self, unit):
        slot = unit % 8; out = []
        for ks in range(4):
            for kt in range(2):
                out.append(("ds_read_b128 %s, v%d offset:%d" % (a(aK+(ks*2+kt)*4, 4), vKr+ks, slot*8192 + kt*4096), ('rd', 'K%d' % slot, unit)))
        return out
    def v_reads(self, unit):
        slot = unit % 8; out = []
        for dt in range(8):
            for hf in range(2):
                out.append(("ds_read_b64_tr_b16 %s, v%d offset:%d" % (a(aV+dt*4+2*hf, 2), vVr+dt, slot*8192 + hf*4096), ('rd', 'V%d' % slot, unit)))
        return out
    def qk_mfmas(self, sbuf, czero=False):
        out = []
        for ks in range(4):
            for kt in range(2):
                for qs in range(4):
                    d = v(vS+32*sbuf+(kt*4+qs)*4, 4)
                    c = d if ks else ("0" if czero else v(vNM+4*qs, 4))
                    out.append(mfma(d, a(aK+(ks*2+kt)*4, 4), v(vQ+(ks*4+qs)*4, 4), c))
        return out
    def pv_mfmas(self, pbuf, czero=False):
        out = []
        for dt in range(8):
            for qs in range(4):
                d = a(aO+(dt*4+qs)*4, 4)
                out.append(mfma(d, a(aV+dt*4, 4), v(vP+16*pbuf+4*qs, 4), "0" if czero else d))
        return out
    def sm_valu(self, buf, first=False):
        S = vS+32*buf; P = vP+16*buf
        seq = []
        for qs in range(4):
            for kt in range(2):
                for r in range(4): seq.append((qs, kt, r, S+(kt*4+qs)*4+r))
        out = []
        for i in range(len(seq)+2):
            if i < 32: out.append(("v_exp_f32 v%d, v%d" % (seq[i][3], seq[i][3]), 8))
            j = i-1
            if 0 <= j < 32:
                qs, kt, r, rg = seq[j]
                if first and kt == 0 and r == 0: out.append(("v_mov_b32 v%d, v%d" % (vL+qs, rg), 4))
                else: out.append(("v_add_f32 v%d, v%d, v%d" % (vL+qs, vL+qs, rg), 4))
                if r & 1: out.append(("v_cvt_pk_bf16_f32 v%d, v%d, v%d" % (P+qs*4+kt*2+(r >> 1), rg-1, rg), 4))
        return out
    def step(self, u, do_qk=True, do_pv=True, first_pv=False, first_sm=False, do_kread=True, do_dma=True, barrier=None, tagu=None):
        A = self.A
        M = []
        if do_qk: M += self.qk_mfmas((u+1) & 1)
        nqk = len(M)
        if do_pv: M += self.pv_mfmas((u-1) & 1, first_pv)
        n = len(M)
        extra = {}
        def put(pos, item): extra.setdefault(pos, []).append(item)
        if do_pv:
            vr = self.v_reads(u-1)
            span = (nqk - 8) if nqk else 1
            for i, it in enumerate(vr): put((i*span)//16 if nqk else -1, it)
        if do_kread:
            kr = self.k_reads(u+2)
            base = nqk if do_pv else max(0, n-26)
            for i, it in enumerate(kr): put(base + (i*24)//8 if do_pv else 4*i+3, it)
        if do_dma:
            pV = max(0, nqk - 7); pK = n - 7
            if not do_pv: pV = pK - 8
            assert abs(pV - pK) > 2
            put(pV, (["s_add_u32 m0, s%d, 0x%x" % (sW2K, LDS_V + ((u+5) % 8)*8192),
                      "buffer_load_dwordx4 v%d, s[%d:%d], s%d offen lds" % (vVd, sV, sV+3, sVo)], ('dma', 'V%d' % ((u+5) % 8), u+5)))
            put(pV+2, (["buffer_load_dwordx4 v%d, s[%d:%d], s%d offen offset:1024 lds" % (vVd+1, sV, sV+3, sVo),
                        "s_add_u32 s%d, s%d, 8192" % (sVo, sVo)], ('dma', 'V%d' % ((u+5) % 8), u+5)))
            put(pK, (["s_add_u32 m0, s%d, 0x%x" % (sW2K, LDS_K + (u % 8)*8192),
                      "buffer_load_dwordx4 v%d, s[%d:%d], s%d offen lds" % (vKd, sK, sK+3, sKo)], ('dma', 'K%d' % (u % 8), u+8)))
            put(pK+2, (["buffer_load_dwordx4 v%d, s[%d:%d], s%d offen offset:1024 lds" % (vKd+1, sK, sK+3, sKo),
                        "s_add_u32 s%d, s%d, 8192" % (sKo, sKo)], ('dma', 'K%d' % (u % 8), u+8)))
        F = self.sm_valu(u & 1, first_sm)
        ecost = {}
        for pos, items in extra.items():
            ecost[pos] = sum(4*(len(t) if isinstance(t, list) else 1) for t, _ in items)
        total = sum(c for _, c in F) + sum(c for p, c in ecost.items() if p >= 0)
        done = 0; fi = 0
        def emit_extra(pos):
            for t_, tg in extra.get(pos, []):
                if isinstance(t_, list):
                    for x in t_: A.i(x, tg if "buffer_load" in x else None)
                else: A.i(t_, tg)
        if -1 in extra:
            emit_extra(-1)
        for k, m in enumerate(M):
            if do_pv and k == nqk: A("s_waitcnt lgkmcnt(0)")
            A(m)
            emit_extra(k); done += ecost.get(k, 0)
            target = total*(k+1)/n
            while fi < len(F) and done + F[fi][1]/2.0 <= target:
                A(F[fi][0]); done += F[fi][1]; fi += 1
        while fi < len(F): A(F[fi][0]); fi += 1
        if barrier is not None:
            A("s_waitcnt vmcnt(%d) lgkmcnt(0)" % barrier); A("s_barrier")
        else:
            A("s_waitcnt lgkmcnt(0)")
    def allreduce_g(self, r, t, op):
        A = self.A
        A("v_mov_b32 v%d, v%d" % (t, r))
        A("v_permlane16_swap_b32 v%d, v%d" % (r, t))
        A("%s v%d, v%d, v%d" % (op, r, r, t))
        A("v_mov_b32 v%d, v%d" % (t, r))
        A("v_permlane32_swap_b32 v%d, v%d" % (r, t))
        A("%s v%d, v%d, v%d" % (op, r, r, t))
    def set_negm(self, mx):
        A = self.A
        for qs in range(4): self.allreduce_g(mx+qs, vT+8+qs, "v_max_f32")
        for qs in range(4):
            for r in range(4): A("v_sub_f32 v%d, 0, v%d" % (vNM+4*qs+r, mx+qs))
    def attention(self):
        A = self.A
        for t_, tg in self.k_reads(0): A.i(t_, tg)
        A("s_mov_b32 s%d, 0x%x" % (sKo, 8*8192))
        A("s_mov_b32 s%d, 0x%x" % (sVo, 5*8192))
        A("s_waitcnt lgkmcnt(0)")
        for m in self.qk_mfmas(0, czero=True): A(m)
        for t_, tg in self.k_reads(1): A.i(t_, tg)
        A("s_cmp_lg_u32 s%d, 0" % sFLAG)
        A("s_cbranch_scc1 L2_havem")
        mx = vT
        for qs in range(4):
            S = [vS+(kt*4+qs)*4+r for kt in range(2) for r in range(4)]
            A("v_max3_f32 v%d, v%d, v%d, v%d" % (mx+qs, S[0], S[1], S[2]))
            A("v_max3_f32 v%d, v%d, v%d, v%d" % (mx+qs, mx+qs, S[3], S[4]))
            A("v_max3_f32 v%d, v%d, v%d, v%d" % (mx+qs, mx+qs, S[5], S[6]))
            A("v_max_f32 v%d, v%d, v%d" % (mx+qs, mx+qs, S[7]))
        self.set_negm(mx)
        A.label("L2_havem")
        A("s_nop 7")
        for qs in range(4):
            for kt in range(2):
                for r in range(4):
                    rg = vS+(kt*4+qs)*4+r
                    A("v_add_f32 v%d, v%d, v%d" % (rg, rg, vNM+4*qs+r))
        A("s_waitcnt lgkmcnt(0)")
        A("s_barrier")
        self.step(0, do_pv=False, first_sm=True)
        A("s_mov_b32 s%d, 0" % sCNT)
        self.step(1, first_pv=True, barrier=16)
        A("s_branch L2_loop2")
        A.label("L2_loop")
        self.loop_start = len(A.code)
        self.step(1+8, barrier=16)
        A.label("L2_loop2")
        for p in range(2, 9):
            self.step(p+8, barrier=16 if p & 1 else None)
            if p == 6:
                A("s_cmp_eq_u32 s%d, 7" % sCNT)
                A("s_cbranch_scc1 L2_tail")
        A("s_add_u32 s%d, s%d, 1" % (sCNT, sCNT))
        A("s_branch L2_loop")
        A.label("L2_tail")
        self.step(63, do_qk=False, do_kread=False, do_dma=False, barrier=12)
        for t_, tg in self.v_reads(63): A.i(t_, tg)
        A("s_waitcnt lgkmcnt(0)")
        for m in self.pv_mfmas(63 & 1): A(m)
    def epilogue(self):
        A = self.A
        for qs in range(4): self.allreduce_g(vL+qs, vT+qs, "v_add_f32")
        A("s_mov_b32 s%d, %s" % (sT2, lit(2.0**120)))
        A("s_mov_b64 s[56:57], -1")
        for qs in range(4):
            A("v_cmp_gt_f32 vcc, s%d, v%d" % (sT2, vL+qs))
            A("s_and_b64 s[56:57], s[56:57], vcc")
        for qs in range(4): A("v_rcp_f32 v%d, v%d" % (vL+qs, vL+qs))
        mx = vT+4
        A("v_mov_b32 v%d, 0" % mx)
        A("s_lshl_b32 s%d, s%d, 12" % (sT0, sHEAD))
        A("s_add_u32 s%d, s%d, s%d" % (sT0, sT0, sOOFF))
        n = 0
        for qs in range(4):
            for t in range(4):
                T = vS + (n % 4)*16; n += 1
                for tt in range(2):
                    for r in range(4):
                        A("v_accvgpr_read_b32 v%d, a%d" % (T+tt*4+r, aO+((2*t+tt)*4+qs)*4+r))
                for i in range(8): A("v_mul_f32 v%d, v%d, v%d" % (T+i, T+i, vL+qs))
                for i in range(4): A("v_maximum3_f32 v%d, v%d, |v%d|, |v%d|" % (mx, mx, T+2*i, T+2*i+1))
                for i in range(4): A("v_cvt_pk_bf16_f32 v%d, v%d, v%d" % (T+8+i, T+2*i, T+2*i+1))
                A("buffer_store_dwordx4 %s, v%d, s[%d:%d], s%d offen offset:%d" % (v(T+8, 4), vLane, sO, sO+3, sT0, t*1024))
            if qs < 3: A("s_add_u32 s%d, s%d, %d" % (sT0, sT0, 128*1024))
        A("s_cmp_lg_u32 s%d, 0" % sFLAG)
        A("s_cbranch_scc1 L2_end")
        A("s_mov_b32 s%d, 0x7f800000" % sT2)
        A("v_cmp_gt_f32 vcc, s%d, v%d" % (sT2, mx))
        A("s_and_b64 s[56:57], s[56:57], vcc")
        A("s_cmp_eq_u64 s[56:57], -1")
        A("s_cselect_b32 s%d, 0, 1" % sT1)
        A("v_mov_b32 v%d, s%d" % (vT+6, sT1))
        A("v_mov_b32 v%d, s%d" % (vT+7, sW))
        A("v_lshlrev_b32 v%d, 2, v%d" % (vT+7, vT+7))
        A("v_add_u32 v%d, 0x%x, v%d" % (vT+7, LDS_C, vT+7))
        A("ds_write_b32 v%d, v%d" % (vT+7, vT+6))
        A("v_mov_b32 v%d, 0x%x" % (vT+7, LDS_C))
        A("s_waitcnt lgkmcnt(0)")
        A("s_barrier")
        A("ds_read_b128 %s, v%d" % (v(vT+8, 4), vT+7))
        A("s_waitcnt lgkmcnt(0)")
        A("v_or_b32 v%d, v%d, v%d" % (vT+8, vT+8, vT+9))
        A("v_or3_b32 v%d, v%d, v%d, v%d" % (vT+8, vT+8, vT+10, vT+11))
        A("v_readfirstlane_b32 s%d, v%d" % (sT1, vT+8))
        A("s_cmp_eq_u32 s%d, 0" % sT1)
        A("s_cbranch_scc1 L2_end")
    def fallback(self):
        A = self.A
        vm = self.vm
        A("s_waitcnt vmcnt(0) lgkmcnt(0)")
        A("s_barrier")
        mx = vT
        for qs in range(4): A("v_mov_b32 v%d, 0xff800000" % (mx+qs))
        A("s_mov_b32 s%d, 0" % sKo)
        A.label("L2_mx")
        A("s_add_u32 m0, s%d, 0x%x" % (sW2K, LDS_K))
        A("s_nop 0")
        A("buffer_load_dwordx4 v%d, s[%d:%d], s%d offen lds" % (vKd, sK, sK+3, sKo))
        A("buffer_load_dwordx4 v%d, s[%d:%d], s%d offen offset:1024 lds" % (vKd+1, sK, sK+3, sKo))
        A("s_waitcnt vmcnt(0)")
        A("s_barrier")
        for t_, tg in self.k_reads(0): A(t_)
        A("s_waitcnt lgkmcnt(0)")
        A("s_barrier")
        for m in self.qk_mfmas(0, czero=True): A(m)
        for qs in range(4):
            S = [vS+(kt*4+qs)*4+r for kt in range(2) for r in range(4)]
            A("v_max3_f32 v%d, v%d, v%d, v%d" % (mx+qs, mx+qs, S[0], S[1]))
            A("v_max3_f32 v%d, v%d, v%d, v%d" % (mx+qs, mx+qs, S[2], S[3]))
            A("v_max3_f32 v%d, v%d, v%d, v%d" % (mx+qs, mx+qs, S[4], S[5]))
            A("v_max3_f32 v%d, v%d, v%d, v%d" % (mx+qs, mx+qs, S[6], S[7]))
        A("s_add_u32 s%d, s%d, 8192" % (sKo, sKo))
        A("s_cmp_lt_u32 s%d, 0x80000" % sKo)
        A("s_cbranch_scc1 L2_mx")
        self.set_negm(mx)
        A("s_mov_b32 s%d, 1" % sFLAG)
        vm.ops = []; vm.done = 0
        for u in range(4): self.dma_unit('K', u, ('K', u))
        for u in range(3): self.dma_unit('V', u, ('V', u))
        A("s_waitcnt vmcnt(0)")
        A("s_barrier")
        self.late_dma()
        A("s_branch L2_att")
    def gen(self):
        A = self.A
        P = self.prof
        P.stamp("start")
        self.setup()
        self.phase1()
        if self.dbg == 'q':
            A("s_waitcnt vmcnt(0)"); A("s_branch L2_end")
        self.attention()
        P.stamp("attend")
        self.epilogue()
        self.fallback()
        A.label("L2_end")
        if P.on:
            A("s_cmp_ge_u32 s2, 256"); A("s_cbranch_scc1 L2_end2")
            P.stamp("end")
            P.dump(40, 41, "s2", "s%d" % sW, vT, 56)
            A.label("L2_end2")
        A("s_endpgm")
        B = finalize(A.code, name="k2")
        self.final = B
        return kernel_head(self.name) + B.text() + kernel_block(self.name, 512, 256, sgprs=102 if P.on else 76)
if __name__ == "__main__":
    k = K2()
    t = k.gen()
    print(len(t.splitlines()), "lines")
    tr = make_trace(k.final.code, {"L2_loop": [], "L2_tail": [False]*7 + [True], "L2_end": [False, False, True], "L2_skipF": [False], "L2_havem": [False]})
    print("trace len", len(tr))
    _, probs = check_hazards(tr)
    print("hazards in trace:", len(probs), probs[:10])
```

```python
from common import *
import math
sO, sH, sWO, sW2, sX, sOUT = 8, 12, 16, 20, 24, 28
sW, sQT, sNT, sLB, sT0, sT1, sT2, sSo, sBo = 40, 41, 42, 43, 44, 45, 46, 47, 48
sBWO, sBW2 = 49, 50
vWf = 0
vBH = 32; vBO = 36; vWd = 40; vWr = 44; vXo = 48; vXv = 50
vRed = 60
vT = 64
aS = 0; aG = 64; aB = 128
NF, NO = 14, 32
NK = NF + NO
def mfma(d, a_, b_, c): return "v_mfma_f32_16x16x32_bf16 %s, %s, %s, %s" % (d, a_, b_, c)

class K3:
    def __init__(self, name="out_kernel", look=7, nslot=8, prof=False, abl=()):
        self.A = Asm(); self.vm = VM(self.A); self.name = name; self.look = look; self.nslot = nslot
        self.prof = Prof(self.A, 2, on=prof); self.abl = abl
    def setup(self):
        A = self.A
        A.lines("""
s_cmp_ge_u32 s2, 256
s_cbranch_scc1 L3_end
s_load_dwordx2 s[4:5], s[0:1], 0
s_load_dwordx2 s[34:35], s[0:1], 64
s_load_dwordx2 s[36:37], s[0:1], 80
v_lshrrev_b32 v%(t0)d, 6, v0
v_and_b32 v%(t1)d, 63, v0
s_and_b32 s%(qt)d, s2, 7
s_lshr_b32 s3, s2, 6
s_lshl_b32 s3, s3, 3
s_add_u32 s%(qt)d, s%(qt)d, s3
s_lshr_b32 s%(nt)d, s2, 3
s_and_b32 s%(nt)d, s%(nt)d, 7
v_readfirstlane_b32 s%(w)d, v%(t0)d
""" % dict(t0=vT, t1=vT+1, qt=sQT, nt=sNT, w=sW))
        if 'sameq' in self.abl: A("s_mov_b32 s%d, 0" % sQT)
        if 'samen' in self.abl: A("s_mov_b32 s%d, 0" % sNT)
        if 'rot' in self.abl:
            A("s_add_u32 s%d, s%d, 1" % (sNT, sNT)); A("s_and_b32 s%d, s%d, 7" % (sNT, sNT))
        if 'n3' in self.abl: A("s_mov_b32 s%d, 3" % sNT)
        if 'xq' in self.abl: A("s_and_b32 s%d, s2, 7" % sQT)
        ln = vT+1; g = vT+2; c = vT+3; r = vT+4; cc = vT+5; t = vT+6; u = vT+7; x = vT+8; l16 = vT+9
        A("v_lshrrev_b32 v%d, 4, v%d" % (g, ln))
        A("v_and_b32 v%d, 15, v%d" % (c, ln))
        A("v_lshrrev_b32 v%d, 2, v%d" % (r, c))
        A("v_and_b32 v%d, 3, v%d" % (cc, ln))
        A("v_lshlrev_b32 v%d, 4, v%d" % (l16, ln))
        A("s_lshl_b32 s%d, s%d, 15" % (sLB, sW))
        A("s_lshl_b32 s3, s%d, 2" % sQT)
        A("s_mul_i32 s%d, s3, 56" % sT0)
        A("s_mul_i32 s%d, s%d, %d" % (sT1, sW, NF))
        A("s_add_u32 s%d, s%d, s%d" % (sT0, sT0, sT1))
        A("s_lshl_b32 s%d, s%d, 10" % (sT0, sT0))
        for qs in range(4):
            A("v_add_u32 v%d, s%d, v%d" % (vBH+qs, sT0, l16))
            if qs < 3: A("s_add_u32 s%d, s%d, %d" % (sT0, sT0, 56*1024))
        A("s_lshl_b32 s%d, s3, 7" % sT0)
        A("s_lshl_b32 s%d, s%d, 5" % (sT1, sW))
        A("s_add_u32 s%d, s%d, s%d" % (sT0, sT0, sT1))
        A("s_lshl_b32 s%d, s%d, 10" % (sT0, sT0))
        for qs in range(4):
            A("v_add_u32 v%d, s%d, v%d" % (vBO+qs, sT0, l16))
            if qs < 3: A("s_add_u32 s%d, s%d, %d" % (sT0, sT0, 128*1024))
        A("v_mov_b32 v%d, v%d" % (vWd, l16))
        A("v_and_b32 v%d, 1, v%d" % (x, g))
        A("v_lshrrev_b32 v%d, 1, v%d" % (t, r))
        A("v_lshl_add_u32 v%d, v%d, 1, v%d" % (x, x, t))
        A("v_lshl_add_u32 v%d, v%d, 2, v%d" % (u, g, r))
        A("v_lshlrev_b32 v%d, 7, v%d" % (u, u))
        A("v_lshl_add_u32 v%d, v%d, 3, v%d" % (u, cc, u))
        A("v_add_u32 v%d, s%d, v%d" % (u, sLB, u))
        for tau in range(4):
            A("v_xor_b32 v%d, %d, v%d" % (t, tau, x))
            A("v_lshl_add_u32 v%d, v%d, 5, v%d" % (vWr+tau, t, u))
        A("s_lshl_b32 s3, s%d, 6" % sQT)
        A("s_lshl_b32 s%d, s%d, 4" % (sT0, sW))
        A("s_add_u32 s3, s3, s%d" % sT0)
        A("v_add_u32 v%d, s3, v%d" % (t, c))
        A("v_lshlrev_b32 v%d, 10, v%d" % (t, t))
        A("v_lshl_add_u32 v%d, v%d, 3, v%d" % (t, g, t))
        A("s_lshl_b32 s3, s%d, 7" % sNT)
        A("v_add_u32 v%d, s3, v%d" % (vXo, t))
        A("s_lshl_b32 s3, s%d, 13" % sW)
        A("v_add_u32 v%d, s3, v%d" % (vRed, l16))
        A("v_add_u32 v%d, s%d, v%d" % (vRed+1, sLB, l16))
        A("s_waitcnt lgkmcnt(0)")
        A("s_mul_i32 s3, s%d, %d" % (sNT, 184*4096))
        A("s_add_u32 s3, s3, 0x%x" % WS_W3)
        A("s_mul_i32 s%d, s%d, %d" % (sT0, sNT, 184*4096))
        srd(A, sWO, 36, 37, "s_sub_u32 s%%d, %d, s%d" % (W3_BYTES, sT0), "s3")
        A("s_mul_i32 s%d, s%d, %d" % (sBWO, sW, NO*4096))
        A("s_mul_i32 s%d, s%d, %d" % (sBW2, sW, NF*4096))
        A("s_add_u32 s%d, s%d, %d" % (sBW2, sBW2, 128*4096))
        srd(A, sO, 36, 37, O_BYTES, "0x%x" % WS_O)
        srd(A, sH, 36, 37, H_BYTES, "0x%x" % WS_H)
        srd(A, sX, 4, 5, 2048*1024)
        srd(A, sOUT, 34, 35, 2048*1024)
    def issue_loads(self, j):
        A = self.A; slot = j % self.nslot
        if j < NF: sbase, sb, vb, jj = sBW2, sH, vBH, j
        else: sbase, sb, vb, jj = sBWO, sO, vBO, j - NF
        sw = sWO
        A("s_add_u32 m0, s%d, 0x%x" % (sLB, slot*4096))
        A("s_add_u32 s%d, s%d, 0x%x" % (sSo, sbase, jj*4096))
        for p in range(4 if 'noW' not in self.abl else 0):
            self.vm.issue("buffer_load_dwordx4 v%d, s[%d:%d], s%d offen offset:%d lds" % (vWd, sw, sw+3, sSo, p*1024), ('W', j), ('dma', 'p_W%d' % slot, j))
        if jj % 4 == 0: A("s_mov_b32 s%d, 0x%x" % (sBo, jj*1024))
        for qs in range(4 if 'noB' not in self.abl else 0):
            self.vm.issue("buffer_load_dwordx4 %s, v%d, s[%d:%d], s%d offen offset:%d" % (a(aB+slot*16+qs*4, 4), vb+qs, sb, sb+3, sBo, (jj & 3)*1024), ('B', j))
    def w_reads(self, j):
        slot = j % self.nslot; par = j & 1; out = []
        for tau in range(4):
            for hp in range(2):
                out.append(("ds_read_b64_tr_b16 %s, v%d offset:%d" % (v(vWf+16*par+4*tau+2*hp, 2), vWr+tau, slot*4096 + hp*2048), ('rd', 'p_W%d' % slot, j) if not self.abl else None))
        return out
    def main(self):
        A = self.A; vm = self.vm
        for j in range(self.look): self.issue_loads(j)
        vm.wait(lambda l: l == ('W', 0))
        self.prof.stamp("firstW")
        for t_, tg in self.w_reads(0): A.i(t_, tg)
        for j in range(NK):
            par = j & 1; slot = j % self.nslot
            if j == NF: self.prof.stamp("ffn2")
            if j+1 < NK: vm.wait(lambda l: l == ('W', j+1) or l == ('B', j), "lgkmcnt(0)")
            else: vm.wait(lambda l: l == ('B', j), "lgkmcnt(0)")
            reads = self.w_reads(j+1) if j+1 < NK else []
            acc = aG if j < NF else aS
            first = j == 0 or j == NF
            k = 0
            for tau in range(4):
                for qs in range(4):
                    d = a(acc+(tau*4+qs)*4, 4)
                    A(mfma(d, v(vWf+16*par+4*tau, 4), a(aB+slot*16+qs*4, 4), "0" if first else d))
                    if k < len(reads): A.i(*reads[k])
                    if k == 8 and j + self.look < NK: self.issue_loads(j + self.look)
                    if k == 8 and j + self.look == NK:
                        for tau2 in range(4):
                            vm.issue("buffer_load_dwordx2 %s, v%d, s[%d:%d], 0 offen offset:%d" % (v(vXv+2*tau2, 2), vXo, sX, sX+3, tau2*32), ('x',))
                    k += 1
    def reduce(self):
        A = self.A; vm = self.vm
        A("s_barrier")
        for dst in range(4):
            if dst == 1: A("v_add_u32 v%d, 0x8000, v%d" % (vRed, vRed))
            if dst == 2: A("v_add_u32 v%d, 0x8000, v%d" % (vRed, vRed))
            if dst == 3: A("v_add_u32 v%d, 0x8000, v%d" % (vRed, vRed))
            for sg, base in enumerate((aS, aG)):
                for tau in range(4):
                    A("ds_write_b128 v%d, %s offset:%d" % (vRed, a(base+(tau*4+dst)*4, 4), sg*4096 + tau*1024))
        A("s_waitcnt lgkmcnt(0)")
        A("s_barrier")
        R = vT
        for src in range(4):
            for sg in range(2):
                for tau in range(4):
                    A("ds_read_b128 %s, v%d offset:%d" % (v(R+src*32+sg*16+tau*4, 4), vRed+1, src*8192 + sg*4096 + tau*1024))
            if src == 1:
                A("s_waitcnt lgkmcnt(0)")
        A("s_waitcnt lgkmcnt(0)")
        for i in range(32): A("v_add_f32 v%d, v%d, v%d" % (R+i, R+i, R+32+i))
        for i in range(32): A("v_add_f32 v%d, v%d, v%d" % (R+64+i, R+64+i, R+96+i))
        for i in range(32): A("v_add_f32 v%d, v%d, v%d" % (R+i, R+i, R+64+i))
        S = R; G = R+16; T = R+32; U = R+48
        def rnd(base, n, tmp):
            for i in range(0, n, 2): A("v_cvt_pk_bf16_f32 v%d, v%d, v%d" % (tmp+i//2, base+i, base+i+1))
            for i in range(0, n, 2):
                A("v_lshlrev_b32 v%d, 16, v%d" % (base+i, tmp+i//2))
                A("v_and_b32 v%d, 0xffff0000, v%d" % (base+i+1, tmp+i//2))
        rnd(G, 16, T); rnd(S, 16, U)
        A("s_mov_b32 s%d, %s" % (sT2, lit(-math.log2(math.e))))
        for i in range(16): A("v_mul_f32 v%d, s%d, v%d" % (T+i, sT2, G+i))
        for i in range(16): A("v_exp_f32 v%d, v%d" % (T+i, T+i))
        for i in range(16): A("v_add_f32 v%d, 1.0, v%d" % (T+i, T+i))
        for i in range(16): A("v_rcp_f32 v%d, v%d" % (T+i, T+i))
        for i in range(16): A("v_mul_f32 v%d, v%d, v%d" % (G+i, G+i, T+i))
        rnd(G, 16, T)
        for i in range(16): A("v_mul_f32 v%d, v%d, v%d" % (S+i, S+i, G+i))
        rnd(S, 16, T)
        vm.wait(lambda l: l == ('x',))
        for i in range(8):
            A("v_lshlrev_b32 v%d, 16, v%d" % (G+2*i, vXv+i))
            A("v_and_b32 v%d, 0xffff0000, v%d" % (G+2*i+1, vXv+i))
        for i in range(16): A("v_add_f32 v%d, v%d, v%d" % (S+i, S+i, G+i))
        for i in range(8): A("v_cvt_pk_bf16_f32 v%d, v%d, v%d" % (T+i, S+2*i, S+2*i+1))
        for tau in range(4):
            A("buffer_store_dwordx2 %s, v%d, s[%d:%d], 0 offen offset:%d" % (v(T+2*tau, 2), vXo, sOUT, sOUT+3, tau*32))
    def gen(self):
        A = self.A
        P = self.prof
        P.stamp("start")
        self.setup(); P.stamp("setup"); self.main(); P.stamp("main"); self.reduce()
        if P.on:
            P.stamp("end")
            P.dump(36, 37, "s2", "s%d" % sW, vT, 52)
        A.label("L3_end"); A("s_endpgm")
        B = finalize(A.code, name="k3"); self.final = B
        return kernel_head(self.name) + B.text() + kernel_block(self.name, 512, 256, sgprs=102 if P.on else 56)
if __name__ == "__main__":
    k = K3(); t = k.gen()
    print(len(t.splitlines()), "lines")
    tr = make_trace(k.final.code)
    print("hazards:", check_hazards(tr)[1][:5])
    e = check_waits(tr); print("wait errs:", len(e), e[:10])
```

```python
import sys
sys.path.insert(0, "k")
from common import *
from k0 import gen_k0
from k2 import K2
from k3 import K3
def gen_all(k2_kw=None, k3_kw=None, launches=("k0","k2","k3"), k0_kw=None):
    hdr = "; LN -> (Q proj + FFN1 + flash attention) -> (O proj + FFN2 + gate), gfx950\n"
    L = {"k0": "; @launch kernel=ln_kernel grid=(256,1,1) block=(256,1,1) lds=0\n",
         "k2": "; @launch kernel=attn_kernel grid=(256,1,1) block=(256,1,1) lds=163840\n",
         "k3": "; @launch kernel=out_kernel grid=(256,1,1) block=(256,1,1) lds=131072\n"}
    for l in launches: hdr += L[l]
    hdr += '.amdgcn_target "amdgcn-amd-amdhsa--gfx950"\n.text\n'
    k2 = K2(**(k2_kw or {})); k3 = K3(**(k3_kw or {}))
    t = hdr + gen_k0(**(k0_kw or {})) + k2.gen() + k3.gen()
    return t, k2, k3
if __name__ == "__main__":
    out = sys.argv[1] if len(sys.argv) > 1 else "full.s"
    import os; os.makedirs(os.path.dirname(out), exist_ok=True)
    prof = "prof" in sys.argv
    abl = tuple(x[4:] for x in sys.argv if x.startswith("abl:"))
    t, k2, k3 = gen_all(dict(prof=prof), dict(prof=prof, abl=abl), k0_kw=dict(prof=prof))
    if prof: print("k2 stamps", k2.prof.names); print("k3 stamps", k3.prof.names)
    open(out, "w").write(t)
    print("wrote", out, len(t), "bytes")
```

```python
import sys
sys.path.insert(0, "lib")
from gen import *
KN = "recurrent_scan__mha_block_cached__dense_activation_silu__prompt_kernel"
WS_XN = 0x0
XN_BYTES = 128*16*1024
WS_H = 0x200000
H_BYTES = 128*56*1024
WS_O = 0x1000000
O_BYTES = 128*128*1024
WS_W3 = 0xA00000
W3_BYTES = 8*184*4096
WS_DBG = 0x2000000

class VM:
    def __init__(self, A): self.A = A; self.ops = []; self.done = 0; self.cap = None
    def issue(self, text, label, tag=None):
        if self.cap is not None and len(self.ops) - self.done >= self.cap[0]:
            n = self.cap[1]; self.done = len(self.ops) - n
            self.A("s_waitcnt vmcnt(%d)" % n)
        self.ops.append(label);
        assert len(self.ops) - self.done <= 63, "vmcnt overflow at %s" % text
        return self.A.i(text, tag)
    def issue_uncounted(self, text, tag=None):
        self.A.i(text, tag); return len(self.ops)
    def wait_pos(self, pos):
        self.A("s_waitcnt vmcnt(%d)" % (len(self.ops) - pos))
    def preload(self, labels):
        self.ops = list(labels); self.done = 0
    def outstanding(self): return len(self.ops) - self.done
    def count_for(self, pred):
        last = -1
        for k in range(len(self.ops)-1, self.done-1, -1):
            if pred(self.ops[k]): last = k; break
        if last < 0: return None
        return len(self.ops) - 1 - last
    def wait(self, pred, extra=""):
        n = self.count_for(pred)
        if n is None:
            if extra: self.A("s_waitcnt " + extra)
            return
        self.done = len(self.ops) - n
        self.A("s_waitcnt vmcnt(%d)%s" % (n, (" " + extra) if extra else ""))
    def wait_all(self, extra=""):
        self.done = len(self.ops)
        self.A("s_waitcnt vmcnt(0)" + ((" " + extra) if extra else ""))

class LG:
    def __init__(self, A): self.A = A; self.ops = []; self.done = 0
    def issue(self, text, label, tag=None):
        self.ops.append(label); return self.A.i(text, tag)
    def count_for(self, pred):
        for k in range(len(self.ops)-1, self.done-1, -1):
            if pred(self.ops[k]): return len(self.ops) - 1 - k
        return None
    def wait(self, pred):
        n = self.count_for(pred)
        if n is None: return
        n = min(n, 15)
        self.done = len(self.ops) - n
        self.A("s_waitcnt lgkmcnt(%d)" % n)
    def reset(self): self.done = len(self.ops)

def srd(A, q, lo, hi, nbytes, off=None):
    if off is None:
        A("s_mov_b32 s%d, s%d" % (q, lo)); A("s_mov_b32 s%d, s%d" % (q+1, hi))
    else:
        A("s_add_u32 s%d, s%d, %s" % (q, lo, off)); A("s_addc_u32 s%d, s%d, 0" % (q+1, hi))
    if isinstance(nbytes, int): A("s_mov_b32 s%d, 0x%x" % (q+2, nbytes))
    else: A(nbytes % (q+2))
    A("s_mov_b32 s%d, 0x00020000" % (q+3))

def f32bits(x):
    import struct
    return struct.unpack("<I", struct.pack("<f", x))[0]
def lit(x): return "0x%08x" % f32bits(x)

def finalize(code, verbose=True, name=""):
    fixed, probs = check_hazards(code, fix=True)
    if verbose and probs:
        print("[%s] inserted nops for %d hazards" % (name, len(probs)))
        if verbose == 2:
            for p in probs[:40]: print("   ", p)
    B = Asm(); B.code = fixed
    return B

class Prof:
    def __init__(self, A, kid, base=64, on=True): self.A = A; self.kid = kid; self.base = base; self.n = 0; self.on = on; self.names = []
    def stamp(self, name=""):
        if not self.on: return
        b = self.base + 4*self.n; self.n += 1; self.names.append(name)
        assert b + 3 < 100
        self.A("s_memtime s[%d:%d]" % (b, b+1)); self.A("s_memrealtime s[%d:%d]" % (b+2, b+3))
    def dump(self, ws_lo, ws_hi, sblk, swave, vt, q):
        if not self.on: return
        A = self.A
        A("s_waitcnt vmcnt(0) lgkmcnt(0)")
        A("s_add_u32 s%d, s%d, 0x%x" % (q, ws_lo, WS_DBG + self.kid*0x100000)); A("s_addc_u32 s%d, s%d, 0" % (q+1, ws_hi))
        A("s_mov_b32 s%d, 0x100000" % (q+2)); A("s_mov_b32 s%d, 0x00020000" % (q+3))
        A("s_lshl_b32 s3, %s, 2" % sblk)
        if swave: A("s_add_u32 s3, s3, %s" % swave)
        A("s_lshl_b32 s3, s3, 8")
        A("v_mov_b32 v%d, s3" % vt)
        for i in range(self.n):
            b = self.base + 4*i
            for j, r in enumerate((b, b+1, b+2, b+3)):
                A("v_mov_b32 v%d, s%d" % (vt+1, r))
                A("buffer_store_dword v%d, v%d, s[%d:%d], 0 offen offset:%d" % (vt+1, vt, q, q+3, i*16+j*4))
                A("s_nop 1")
        A("s_waitcnt vmcnt(0)")

class Prof2:
    def __init__(self, A, kid, vreg=255, sets=((96, 98), (100, 40)), on=True): self.A = A; self.kid = kid; self.v = vreg; self.sets = sets; self.n = 0; self.on = on; self.names = []
    def flush(self):
        A = self.A; n = self.n - 1
        if n < 0: return
        c, r = self.sets[n & 1]
        A("s_waitcnt lgkmcnt(0)")
        for j, sr in enumerate((c, c+1, r, r+1)): A("v_writelane_b32 v%d, s%d, %d" % (self.v, sr, 4*n+j))
    def stamp(self, name=""):
        if not self.on: return
        A = self.A
        c, r = self.sets[self.n & 1]
        A("s_memtime s[%d:%d]" % (c, c+1)); A("s_memrealtime s[%d:%d]" % (r, r+1))
        if self.n > 0:
            self.flush()
        self.n += 1; self.names.append(name); assert self.n <= 16
    def dump(self, srd, sblk, swave, vt):
        if not self.on: return
        A = self.A
        self.flush()
        A("s_lshl_b32 s3, %s, 2" % sblk); A("s_add_u32 s3, s3, %s" % swave); A("s_lshl_b32 s3, s3, 8")
        A("s_add_u32 s3, s3, 0x%x" % (WS_DBG + self.kid*0x100000))
        A("v_mbcnt_lo_u32_b32 v%d, -1, 0" % vt); A("v_mbcnt_hi_u32_b32 v%d, -1, v%d" % (vt, vt))
        A("v_lshlrev_b32 v%d, 2, v%d" % (vt, vt))
        A("buffer_store_dword v%d, v%d, s[%d:%d], s3 offen" % (self.v, vt, srd, srd+3))
        A("s_waitcnt vmcnt(0)")
```

```python
from common import *
def gen_k0(name="ln_kernel", prof=False, touch=True):
    A = Asm()
    P = Prof(A, 0, base=64, on=prof)
    P.stamp("start")
    A.lines("""
s_cmp_ge_u32 s2, 256
s_cbranch_scc1 L0_end
s_load_dwordx2 s[4:5], s[0:1], 0
s_load_dwordx2 s[6:7], s[0:1], 80
s_load_dwordx2 s[24:25], s[0:1], 24
s_load_dwordx2 s[26:27], s[0:1], 48
s_load_dwordx4 s[28:31], s[0:1], 8
v_and_b32 v1, 1, v0
v_lshrrev_b32 v2, 6, v0
v_and_b32 v3, 63, v0
v_lshrrev_b32 v3, 1, v3
s_lshl_b32 s3, s2, 3
v_lshl_add_u32 v4, v2, 1, v1
v_add_u32 v4, s3, v4
v_lshlrev_b32 v5, 10, v4
v_lshl_add_u32 v5, v3, 4, v5
s_waitcnt lgkmcnt(0)
""")
    srd(A, 8, 4, 5, 2048*1024)
    srd(A, 12, 6, 7, XN_BYTES)
    A("buffer_load_dwordx4 v[8:11], v5, s[8:11], 0 offen")
    A("buffer_load_dwordx4 v[12:15], v5, s[8:11], 0 offen offset:512")
    ntouch = 0
    if touch:
        srd(A, 16, 24, 25, 4096*1024)
        A("s_and_b32 s3, s2, 7"); A("s_lshr_b32 s33, s2, 3")
        A("v_and_b32 v50, 127, v0"); A("s_lshl_b32 s34, s33, 7"); A("v_add_u32 v50, s34, v50")
        A("v_lshrrev_b32 v51, 3, v50"); A("v_lshlrev_b32 v51, 13, v51")
        A("v_and_b32 v50, 7, v50"); A("v_lshl_add_u32 v51, v50, 7, v51")
        A("s_lshl_b32 s34, s3, 10")
        A("buffer_load_dword v60, v51, s[16:19], s34 offen"); ntouch += 1
        srd(A, 20, 26, 27, 1792*1024)
        A("v_and_b32 v50, 63, v0"); A("s_lshl_b32 s34, s33, 6"); A("v_add_u32 v50, s34, v50")
        A("v_lshrrev_b32 v51, 2, v50"); A("v_mul_u32_u24 v51, 3584, v51")
        A("v_and_b32 v50, 3, v50"); A("v_lshl_add_u32 v51, v50, 7, v51")
        A("s_min_u32 s34, s3, 6"); A("s_lshl_b32 s34, s34, 9")
        A("buffer_load_dword v61, v51, s[20:23], s34 offen"); ntouch += 1
        if touch == 2:
            srd(A, 36, 28, 29, 32*524288); srd(A, 40, 30, 31, 32*524288)
            A("s_lshl_b32 s34, s33, 6"); A("v_and_b32 v50, 63, v0"); A("v_add_u32 v50, s34, v50")
            A("v_lshrrev_b32 v51, 9, v50"); A("v_lshlrev_b32 v51, 19, v51"); A("v_and_b32 v50, 511, v50"); A("v_lshl_add_u32 v51, v50, 7, v51")
            A("s_lshl_b32 s34, s3, 21")
            A("buffer_load_dword v62, v51, s[36:39], s34 offen"); ntouch += 1
            A("buffer_load_dword v63, v51, s[40:43], s34 offen"); ntouch += 1
    A.lines("""
v_lshrrev_b32 v6, 4, v4
v_lshlrev_b32 v6, 14, v6
v_lshrrev_b32 v7, 2, v3
v_lshl_add_u32 v6, v7, 10, v6
v_and_b32 v7, 3, v3
v_lshl_add_u32 v6, v7, 8, v6
v_and_b32 v7, 15, v4
v_lshl_add_u32 v6, v7, 4, v6
s_waitcnt vmcnt(%d)
""" % ntouch)
    X = 16
    for i in range(8):
        A("v_lshlrev_b32 v%d, 16, v%d" % (X+2*i, 8+i))
        A("v_and_b32 v%d, 0xffff0000, v%d" % (X+2*i+1, 8+i))
    for i in range(8): A("v_add_f32 v%d, v%d, v%d" % (32+i, X+i, X+8+i))
    for i in range(4): A("v_add_f32 v%d, v%d, v%d" % (32+i, 32+i, 36+i))
    for i in range(2): A("v_add_f32 v%d, v%d, v%d" % (32+i, 32+i, 34+i))
    A("v_add_f32 v32, v32, v33")
    def allreduce(r, t):
        for k in (2, 4, 8):
            A("v_add_f32_dpp v%d, v%d, v%d row_ror:%d row_mask:0xf bank_mask:0xf" % (r, r, r, k))
        A("v_mov_b32 v%d, v%d" % (t, r))
        A("v_permlane16_swap_b32 v%d, v%d" % (r, t))
        A("v_add_f32 v%d, v%d, v%d" % (r, r, t))
        A("v_mov_b32 v%d, v%d" % (t, r))
        A("v_permlane32_swap_b32 v%d, v%d" % (r, t))
        A("v_add_f32 v%d, v%d, v%d" % (r, r, t))
    allreduce(32, 33)
    A("v_mul_f32 v40, %s, v32" % lit(1.0/512))
    A("v_cvt_pk_bf16_f32 v41, v40, v40")
    A("v_and_b32 v41, 0xffff0000, v41")
    for i in range(16): A("v_sub_f32 v%d, v%d, v40" % (44+i, X+i))
    A("v_mul_f32 v32, v44, v44")
    A("v_mul_f32 v33, v45, v45")
    for i in range(2, 16): A("v_fmac_f32 v%d, v%d, v%d" % (32+(i & 1), 44+i, 44+i))
    A("v_add_f32 v32, v32, v33")
    allreduce(32, 33)
    A.lines("""
v_mul_f32 v32, %s, v32
v_cvt_pk_bf16_f32 v32, v32, v32
v_and_b32 v32, 0xffff0000, v32
v_add_f32 v32, %s, v32
v_cvt_pk_bf16_f32 v32, v32, v32
v_and_b32 v32, 0xffff0000, v32
v_sqrt_f32 v32, v32
s_nop 0
v_cvt_pk_bf16_f32 v32, v32, v32
v_and_b32 v32, 0xffff0000, v32
v_rcp_f32 v33, v32
""" % (lit(1.0/512), lit(1e-5)))
    for i in range(16): A("v_sub_f32 v%d, v%d, v41" % (44+i, X+i))
    for i in range(8): A("v_cvt_pk_bf16_f32 v%d, v%d, v%d" % (8+i, 44+2*i, 45+2*i))
    for i in range(8):
        A("v_lshlrev_b32 v%d, 16, v%d" % (44+2*i, 8+i))
        A("v_and_b32 v%d, 0xffff0000, v%d" % (45+2*i, 8+i))
    for i in range(16): A("v_mul_f32 v%d, v%d, v33" % (X+i, 44+i))
    for i in range(16): A("v_fma_f32 v%d, -v%d, v32, v%d" % (44+i, X+i, 44+i))
    for i in range(16): A("v_fmac_f32 v%d, v%d, v33" % (X+i, 44+i))
    for i in range(8): A("v_cvt_pk_bf16_f32 v%d, v%d, v%d" % (8+i, X+2*i, X+2*i+1))
    A("s_movk_i32 s3, 0x2000")
    A("buffer_store_dwordx4 v[8:11], v6, s[12:15], 0 offen")
    A("buffer_store_dwordx4 v[12:15], v6, s[12:15], s3 offen")
    if prof:
        A("v_readfirstlane_b32 s20, v2")
        P.stamp("end")
        P.dump(6, 7, "s2", "s20", 40, 24)
    A("s_waitcnt vmcnt(0)")
    A.label("L0_end")
    A("s_endpgm")
    B = finalize(A.code, name="k0")
    return kernel_head(name) + B.text() + kernel_block(name, 64, 64, sgprs=102 if prof else 48)
if __name__ == "__main__":
    print(gen_k0())
```

```python
from common import *
import math
sK, sV, sWQ, sW1, sXN, sH, sO = 8, 12, 16, 20, 24, 28, 32
sHEAD, sQT, sW, sW2K, sW1K = 42, 43, 44, 45, 46
sKo, sVo, sCNT, sFLAG, sT0, sT1, sT2 = 47, 48, 49, 50, 51, 52, 53
sHOFF, sOOFF = 54, 55
sWO, sW2, sW3 = 60, 64, 68
sCL, sCS, sC2L, sC2S = 4, 5, 56, 58
sQS = 6
sX, sOUT, sDBG = 76, 80, 84
sSIG, sACQ = 88, 89
sB = 90
sSo, sLB3 = 94, 95
sBWO, sBW2, sBH0, sBO0, sC2, sC3 = 36, 37, 38, 39, 72, 73
sSPIN = 74
SPIN_LIMIT = 0x10000
vQ = 0
vS = 64
vP = 128
vNM = 160
vL = 176
vWf = 128
vKr = 180
vVr = 184
vKd = 192
vVd = 194
vWr = 196
vWrF = 200
vWdQ = 204
vWdF = 206
vX = 207
vLane = 211
vT = 212
vCA = 244
vWr3 = 248
vXo = 252; vPollA = 253; vPollD = 254
vG = 0
vWf3 = 64
vXv = 196
vRed = 204
vR3 = 64
aS3 = 0
BREG = [192, 208, 224, 240, 128, 144, 160, 176]
NF, NO = 14, 32
NK = NF + NO
LOOK = 7
LDS_VOTE = 98304
aO = 0; aK = 128; aV = 160
aX = 0
aF = 192
LDS_K = 0; LDS_V = 65536; LDS_C = 131072
LDS_W = 90112; WSLOT = 12288; NWS = 6
QSCALE = math.log2(math.e) / math.sqrt(128.0)

def mfma(d, a_, b_, c): return "v_mfma_f32_16x16x32_bf16 %s, %s, %s, %s" % (d, a_, b_, c)

class K23:
    def __init__(self, dbg=None, name="attn_kernel", prof=False, opt=()):
        self.A = Asm(); self.vm = VM(self.A); self.lg = LG(self.A); self.dbg = dbg; self.name = name
        self.prof = Prof2(self.A, 1, on=prof); self.opt = opt
    def setup(self):
        A = self.A
        A.lines("""
s_cmp_ge_u32 s2, 256
s_cbranch_scc1 L2_end
s_load_dwordx4 s[4:7], s[0:1], 8
s_load_dwordx2 s[36:37], s[0:1], 24
s_load_dwordx2 s[38:39], s[0:1], 48
s_load_dwordx2 s[72:73], s[0:1], 32
s_load_dwordx2 s[74:75], s[0:1], 56
s_load_dwordx2 s[40:41], s[0:1], 80
s_load_dwordx2 s[88:89], s[0:1], 0
s_load_dwordx4 s[92:95], s[0:1], 64
v_lshrrev_b32 v%(t0)d, 6, v0
v_and_b32 v%(t1)d, 63, v0
s_and_b32 s%(head)d, s2, 7
s_lshl_b32 s%(head)d, s%(head)d, 2
s_lshr_b32 s3, s2, 3
s_and_b32 s3, s3, 3
s_add_u32 s%(head)d, s%(head)d, s3
s_lshr_b32 s%(qt)d, s2, 5
v_readfirstlane_b32 s%(w)d, v%(t0)d
""" % dict(t0=vT, t1=vT+1, head=sHEAD, qt=sQT, w=sW))
        ln = vT+1; g = vT+2; c = vT+3; r = vT+4; cc = vT+5; t = vT+6; u = vT+7; x = vT+8
        A("v_lshrrev_b32 v%d, 4, v%d" % (g, ln))
        A("v_and_b32 v%d, 15, v%d" % (c, ln))
        A("v_lshrrev_b32 v%d, 2, v%d" % (r, c))
        A("v_and_b32 v%d, 3, v%d" % (cc, ln))
        A("v_lshlrev_b32 v%d, 4, v%d" % (vLane, ln))
        A("s_lshl_b32 s%d, s%d, 11" % (sW2K, sW))
        A("s_lshl_b32 s%d, s%d, 10" % (sW1K, sW))
        for ks in range(4):
            A("v_add_u32 v%d, %d, v%d" % (t, 4*ks, g))
            A("v_xor_b32 v%d, v%d, v%d" % (t, t, c))
            A("v_lshlrev_b32 v%d, 4, v%d" % (t, t))
            A("v_lshl_add_u32 v%d, v%d, 8, v%d" % (vKr+ks, c, t))
        A("v_lshl_add_u32 v%d, v%d, 2, v%d" % (u, g, r))
        A("v_and_b32 v%d, 7, v%d" % (x, u))
        A("v_lshlrev_b32 v%d, 8, v%d" % (u, u))
        A("v_lshl_add_u32 v%d, v%d, 3, v%d" % (u, cc, u))
        A("v_add_u32 v%d, 0x%x, v%d" % (u, LDS_V, u))
        for dt in range(8):
            A("v_xor_b32 v%d, %d, v%d" % (t, dt, x))
            A("v_lshl_add_u32 v%d, v%d, 5, v%d" % (vVr+dt, t, u))
        A("v_mov_b32 v%d, s%d" % (u, sW))
        A("v_lshl_add_u32 v%d, v%d, 3, v%d" % (u, u, g))
        for p in range(2):
            A("v_add_u32 v%d, %d, v%d" % (t, 4*p, u))
            A("v_and_b32 v%d, 15, v%d" % (t, t))
            A("v_xor_b32 v%d, v%d, v%d" % (t, t, c))
            A("v_lshlrev_b32 v%d, 4, v%d" % (t, t))
            A("v_lshl_add_u32 v%d, v%d, 8, v%d" % (vKd+p, u, t))
            A("v_add_u32 v%d, %d, v%d" % (t, 4*p, g))
            A("v_lshlrev_b32 v%d, 1, v%d" % (t, t))
            A("v_xor_b32 v%d, v%d, v%d" % (t, t, c))
            A("v_lshlrev_b32 v%d, 4, v%d" % (t, t))
            A("v_lshl_add_u32 v%d, v%d, 8, v%d" % (vVd+p, u, t))
        A("v_and_b32 v%d, 1, v%d" % (t, r))
        A("v_and_b32 v%d, 1, v%d" % (x, g))
        A("v_lshl_add_u32 v%d, v%d, 1, v%d" % (x, x, t))
        A("v_lshl_add_u32 v%d, v%d, 3, v%d" % (u, g, r))
        A("v_lshlrev_b32 v%d, 8, v%d" % (u, u))
        A("v_lshl_add_u32 v%d, v%d, 4, v%d" % (u, cc, u))
        A("v_add_u32 v%d, 0x%x, v%d" % (u, LDS_W, u))
        for ks in range(4):
            A("v_xor_b32 v%d, %d, v%d" % (t, ks, x))
            A("v_lshl_add_u32 v%d, v%d, 6, v%d" % (vWr+ks, t, u))
        A("v_lshrrev_b32 v%d, 1, v%d" % (t, r))
        A("v_and_b32 v%d, 1, v%d" % (x, g))
        A("v_lshl_add_u32 v%d, v%d, 1, v%d" % (x, x, t))
        A("v_lshl_add_u32 v%d, v%d, 3, v%d" % (u, g, r))
        A("v_lshlrev_b32 v%d, 7, v%d" % (u, u))
        A("v_lshl_add_u32 v%d, v%d, 3, v%d" % (u, cc, u))
        A("v_add_u32 v%d, 0x%x, v%d" % (u, LDS_W + 8192, u))
        for tau in range(4):
            A("v_xor_b32 v%d, %d, v%d" % (t, tau, x))
            A("v_lshl_add_u32 v%d, v%d, 5, v%d" % (vWrF+tau, t, u))
        A("s_and_b32 s3, s%d, 1" % sW)
        A("s_lshl_b32 s3, s3, 1")
        A("v_and_b32 v%d, 1, v%d" % (x, g))
        A("v_or_b32 v%d, s3, v%d" % (x, x))
        A("v_lshlrev_b32 v%d, 2, v%d" % (t, x))
        A("v_xor_b32 v%d, v%d, v%d" % (t, t, c))
        A("v_lshlrev_b32 v%d, 4, v%d" % (t, t))
        A("s_lshl_b32 s%d, s%d, 3" % (sT0, sW))
        A("v_add_u32 v%d, s%d, v%d" % (u, sT0, g))
        A("v_lshl_add_u32 v%d, v%d, 13, v%d" % (vWdQ, u, t))
        A("v_add_u32 v%d, %d, v%d" % (vWdQ+1, 4*8192 - 1024, vWdQ))
        A("v_lshrrev_b32 v%d, 3, v%d" % (u, ln))
        A("v_lshlrev_b32 v%d, 1, v%d" % (x, x))
        A("v_and_b32 v%d, 7, v%d" % (t, ln))
        A("v_xor_b32 v%d, v%d, v%d" % (t, t, x))
        A("v_lshlrev_b32 v%d, 4, v%d" % (t, t))
        A("v_add_u32 v%d, s%d, v%d" % (u, sT0, u))
        A("v_mul_u32_u24 v%d, 3584, v%d" % (u, u))
        A("v_add_u32 v%d, v%d, v%d" % (vWdF, u, t))
        A("v_lshrrev_b32 v%d, 3, v%d" % (u, ln))
        A("v_mul_u32_u24 v%d, %d, v%d" % (u, 184*4096, u))
        A("v_and_b32 v%d, 7, v%d" % (x, ln))
        A("s_lshl_b32 s%d, s%d, 1" % (sT0, sW))
        for jj in range(2):
            A("s_add_u32 s3, s%d, %d" % (sT0, jj)); A("s_and_b32 s3, s3, 3"); A("s_lshl_b32 s3, s3, 1")
            A("v_xor_b32 v%d, s3, v%d" % (t, x))
            A("v_lshl_add_u32 v%d, v%d, 4, v%d" % (vCA+jj, t, u))
        A("s_mul_i32 s%d, s2, 7" % sT1)
        A("s_add_u32 s%d, s%d, s%d" % (sT1, sT1, sT0))
        for jj in range(2):
            A("s_add_u32 s3, s%d, %d" % (sT1, jj)); A("s_min_u32 s3, s3, 1791")
            A("s_lshl_b32 s%d, s3, 10" % (sC2L+jj))
            A("s_lshr_b32 s%d, s3, 5" % sT2); A("s_add_u32 s%d, s%d, 128" % (sT2, sT2)); A("s_lshl_b32 s%d, s%d, 12" % (sT2, sT2))
            A("s_and_b32 s%d, s3, 31" % sT0); A("s_lshl_b32 s%d, s%d, 7" % (sT0, sT0))
            A("s_add_u32 s%d, s%d, s%d" % (sC2S+jj, sT2, sT0))
            A("s_lshr_b32 s3, s3, 1"); A("s_and_b32 s3, s3, 3"); A("s_lshl_b32 s3, s3, 1")
            A("v_xor_b32 v%d, s3, v%d" % (t, x))
            A("v_lshl_add_u32 v%d, v%d, 4, v%d" % (vCA+2+jj, t, u))
        A("s_lshl_b32 s3, s%d, 4" % sQT)
        A("s_lshl_b32 s%d, s%d, 2" % (sT0, sW))
        A("s_add_u32 s3, s3, s%d" % sT0)
        A("s_mul_i32 s%d, s3, %d" % (sHOFF, 56*1024))
        A("s_lshl_b32 s%d, s3, 17" % sOOFF)
        A("s_lshl_b32 s3, s3, 14")
        for qs in range(4):
            A("v_add_u32 v%d, s3, v%d" % (vX+qs, vLane))
            if qs < 3: A("s_add_u32 s3, s3, 16384")
        A("s_waitcnt lgkmcnt(0)")
        A("s_lshl_b32 s3, s%d, 19" % sHEAD)
        srd(A, sK, 4, 5, 524288, "s3")
        srd(A, sV, 6, 7, 524288, "s3")
        A("s_lshl_b32 s3, s%d, 8" % sHEAD)
        srd(A, sWQ, 36, 37, "s_sub_u32 s%d, 0x400000, s3", "s3")
        A("s_min_u32 s3, s%d, 27" % sHEAD)
        A("s_lshl_b32 s3, s3, 7")
        srd(A, sW1, 38, 39, "s_sub_u32 s%d, " + str(512*3584) + ", s3", "s3")
        srd(A, sXN, 40, 41, 0x2400000 if self.prof.on else 0x2000000)
        srd(A, sH, 40, 41, H_BYTES, "0x%x" % WS_H)
        A("s_cmp_ge_u32 s%d, 28" % sHEAD)
        A("s_cselect_b32 s%d, 0, s%d" % (sH+2, sH+2))
        srd(A, sO, 40, 41, O_BYTES, "0x%x" % WS_O)
        srd(A, sWO, 72, 73, 4096*1024)
        srd(A, sW2, 74, 75, 1792*1024)
        srd(A, sW3, 40, 41, W3_BYTES, "0x%x" % WS_W3)
        srd(A, sX, 88, 89, 2048*1024)
        srd(A, sOUT, 92, 93, 2048*1024)
        srd(A, sDBG, 94, 95, 256)
        A("s_lshl_b32 s3, s2, 4")
        A("s_lshl_b32 s%d, s%d, 2" % (sT0, sW))
        A("s_add_u32 s3, s3, s%d" % sT0)
        A("s_lshl_b32 s%d, s3, 10" % sCL)
        A("s_lshr_b32 s%d, s3, 5" % sT0); A("s_lshl_b32 s%d, s%d, 12" % (sT0, sT0))
        A("s_and_b32 s3, s3, 31"); A("s_lshl_b32 s3, s3, 7")
        A("s_add_u32 s%d, s%d, s3" % (sCS, sT0))
        A("s_mov_b32 s%d, %s" % (sQS, lit(QSCALE))); A("s_mov_b32 s%d, %s" % (sQS+1, lit(QSCALE)))
        A("s_mov_b32 s%d, 0" % sFLAG)
    def setup3(self):
        A = self.A
        ln = vT+1; g = vT+2; c = vT+3; r = vT+4; cc = vT+5; t = vT+6; u = vT+7; x = vT+8
        A("s_and_b32 s3, s2, 3"); A("s_lshl_b32 s%d, s%d, 2" % (sT0, sQT)); A("s_add_u32 s%d, s%d, s3" % (sT0, sT0))
        A("s_lshr_b32 s3, s2, 2"); A("s_and_b32 s3, s3, 1"); A("s_lshl_b32 s3, s3, 2")
        A("s_lshr_b32 s%d, s2, 3" % sT1); A("s_and_b32 s%d, s%d, 3" % (sT1, sT1)); A("s_add_u32 s%d, s%d, s3" % (sT1, sT1))
        A("s_lshl_b32 s3, s%d, 6" % sT0); A("s_lshl_b32 s%d, s%d, 4" % (sT2, sW)); A("s_add_u32 s3, s3, s%d" % sT2)
        A("v_add_u32 v%d, s3, v%d" % (t, c))
        A("v_lshlrev_b32 v%d, 10, v%d" % (t, t))
        A("v_lshl_add_u32 v%d, v%d, 3, v%d" % (t, g, t))
        A("s_lshl_b32 s3, s%d, 7" % sT1)
        A("v_add_u32 v%d, s3, v%d" % (vXo, t))
        A("s_lshl_b32 s%d, s%d, 2" % (sT0, sT0))
        A("s_mul_i32 s3, s%d, 56" % sT0); A("s_mul_i32 s%d, s%d, %d" % (sT2, sW, NF)); A("s_add_u32 s3, s3, s%d" % sT2)
        A("s_lshl_b32 s3, s3, 10"); A("s_add_u32 s%d, s3, 0x%x" % (sBH0, WS_H))
        A("s_lshl_b32 s3, s%d, 7" % sT0); A("s_lshl_b32 s%d, s%d, 5" % (sT2, sW)); A("s_add_u32 s3, s3, s%d" % sT2)
        A("s_lshl_b32 s3, s3, 10"); A("s_add_u32 s%d, s3, 0x%x" % (sBO0, WS_O))
        A("s_mul_i32 s3, s%d, %d" % (sT1, 184*4096))
        A("s_mul_i32 s%d, s%d, %d" % (sT2, sW, NO*4096)); A("s_add_u32 s%d, s3, s%d" % (sBWO, sT2))
        A("s_mul_i32 s%d, s%d, %d" % (sT2, sW, NF*4096)); A("s_add_u32 s3, s3, s%d" % sT2); A("s_add_u32 s%d, s3, %d" % (sBW2, 128*4096))
        A("s_lshl_b32 s%d, s%d, 15" % (sLB3, sW)); A("s_cmp_eq_u32 s%d, 3" % sW); A("s_cselect_b32 s3, 0x8000, 0"); A("s_add_u32 s%d, s%d, s3" % (sLB3, sLB3))
        A("v_and_b32 v%d, 1, v%d" % (x, g))
        A("v_lshrrev_b32 v%d, 1, v%d" % (t, r))
        A("v_lshl_add_u32 v%d, v%d, 1, v%d" % (x, x, t))
        A("v_lshl_add_u32 v%d, v%d, 2, v%d" % (u, g, r))
        A("v_lshlrev_b32 v%d, 7, v%d" % (u, u))
        A("v_lshl_add_u32 v%d, v%d, 3, v%d" % (u, cc, u))
        A("v_add_u32 v%d, s%d, v%d" % (u, sLB3, u))
        for tau in range(4):
            A("v_xor_b32 v%d, %d, v%d" % (t, tau, x))
            A("v_lshl_add_u32 v%d, v%d, 5, v%d" % (vWr3+tau, t, u))
        A("v_and_b32 v%d, 7, v%d" % (t, ln)); A("v_lshlrev_b32 v%d, 2, v%d" % (vPollA, t))
        A("s_lshl_b32 s%d, s%d, 2" % (sC2, sQT)); A("s_add_u32 s%d, s%d, 128" % (sC3, sC2))
        A("s_and_b32 s3, s%d, 3" % sQT); A("s_add_u32 s3, s3, 1")
        A("s_cmp_eq_u32 s%d, 0" % sW)
        A("s_cselect_b32 s%d, s3, 0xffff" % sSIG)
        A("s_cselect_b32 s%d, 0, 1" % sACQ)
    def signal(self, soff):
        A = self.A
        A("v_lshlrev_b32 v%d, 4, v%d" % (vT, vLane)); A("v_mov_b32 v%d, 1" % (vT+1))
        self.vm.issue_uncounted("buffer_atomic_add v%d, v%d, s[%d:%d], s%d offen" % (vT+1, vT, sDBG, sDBG+3, soff))
    def w_ops(self, k):
        A = self.A; slot = k % NWS; base = LDS_W + slot*WSLOT
        def q0():
            A("s_add_u32 m0, s%d, 0x%x" % (sW2K, base)); A("s_mov_b32 s%d, 0x%x" % (sT0, k*32*8192))
            self.vm.issue("buffer_load_dwordx4 v%d, s[%d:%d], s%d offen lds" % (vWdQ, sWQ, sWQ+3, sT0), ('W', k), ('dma', 'W%d' % slot, k))
            self.vm.issue("buffer_load_dwordx4 v%d, s[%d:%d], s%d offen offset:1024 lds" % (vWdQ+1, sWQ, sWQ+3, sT0), ('W', k), ('dma', 'W%d' % slot, k))
        def f0():
            A("s_add_u32 m0, s%d, 0x%x" % (sW1K, base + 8192)); A("s_mov_b32 s%d, 0x%x" % (sT0, k*32*3584))
            self.vm.issue("buffer_load_dwordx4 v%d, s[%d:%d], s%d offen lds" % (vWdF, sW1, sW1+3, sT0), ('W', k), ('dma', 'W%d' % slot, k))
        return [q0, f0]
    def x_ops(self, k):
        A = self.A; out = []
        for qs in range(4):
            def f(qs=qs):
                if qs == 0: A("s_mov_b32 s%d, %d" % (sT1, (k >> 2)*4096))
                self.vm.issue("buffer_load_dwordx4 %s, v%d, s[%d:%d], s%d offen offset:%d" % (a(aX + (k % 8)*16 + qs*4, 4), vX+qs, sXN, sXN+3, sT1, (k & 3)*1024), ('xn', k))
            out.append(f)
        return out
    def kv_ops(self, kind, unit):
        return [lambda: self.dma_unit(kind, unit, (kind, unit))]
    def copy_loads(self):
        out = []
        for j in range(4):
            out.append(lambda j=j: self.vm.issue("buffer_load_dwordx4 %s, v%d, s[%d:%d], s%d offen offset:%d" % (v(vT+4*j, 4), vLane, sWO, sWO+3, sCL, j*1024), ('cl', j)))
        for j in range(2):
            out.append(lambda j=j: self.vm.issue("buffer_load_dwordx4 %s, v%d, s[%d:%d], s%d offen" % (v(vT+16+4*j, 4), vLane, sW2, sW2+3, sC2L+j), ('cl', 4+j)))
        return out
    def copy_stores(self):
        out = []
        def st(j):
            self.vm.wait(lambda l: l == ('cl', j))
            if j < 4: self.vm.issue("buffer_store_dwordx4 %s, v%d, s[%d:%d], s%d offen offset:%d sc1" % (v(vT+4*j, 4), vCA+(j >> 1), sW3, sW3+3, sCS, j*128), ('cs', j))
            else: self.vm.issue("buffer_store_dwordx4 %s, v%d, s[%d:%d], s%d offen sc1" % (v(vT+4*j, 4), vCA+2+(j-4), sW3, sW3+3, sC2S+(j-4)), ('cs', j))
        for j in range(6): out.append(lambda j=j: st(j))
        return out
    def dma_unit(self, kind, unit, label, soff=None, slot=None):
        A = self.A
        slot = unit % 8 if slot is None else slot
        base, sr, vo = (LDS_K, sK, vKd) if kind == 'K' else (LDS_V, sV, vVd)
        A("s_add_u32 m0, s%d, 0x%x" % (sW2K, base + slot*8192))
        if soff is None:
            A("s_mov_b32 s%d, 0x%x" % (sT0, unit*8192)); so = sT0
        else: so = soff
        self.vm.issue("buffer_load_dwordx4 v%d, s[%d:%d], s%d offen lds" % (vo, sr, sr+3, so), label, ('dma', kind+str(slot), unit))
        self.vm.issue("buffer_load_dwordx4 v%d, s[%d:%d], s%d offen offset:1024 lds" % (vo+1, sr, sr+3, so), label, ('dma', kind+str(slot), unit))
    def w_tile_reads(self, t):
        k, tau = divmod(t, 12); slot = k % NWS
        for hp in range(2):
            if tau < 8: ar, off = vWr + (tau >> 1), slot*WSLOT + hp*1024 + 8*(tau & 1)
            else: ar, off = vWrF + (tau-8), slot*WSLOT + hp*512
            self.lg.issue("ds_read_b64_tr_b16 %s, v%d offset:%d" % (v(vWf+4*tau+2*hp, 2), ar, off), ('Wt', t), ('rd', 'W%d' % slot, k))
    def q_epi_ops(self, ks):
        out = []
        for qs in range(4):
            i = ks*4 + qs
            for j in range(4): out.append("v_pk_mul_f32 %s, %s, s[%d:%d]" % (v(8*i+2*j, 2), v(8*i+2*j, 2), sQS, sQS+1))
            for j in range(4): out.append("v_cvt_pk_bf16_f32 v%d, v%d, v%d" % (4*i+j, 8*i+2*j, 8*i+2*j+1))
        return out
    def f_epilogue(self):
        A = self.A
        nl = -math.log2(math.e)
        A("s_mov_b32 s%d, %s" % (sT2, lit(nl)))
        A("s_lshl_b32 s%d, s%d, 11" % (sT0, sHEAD))
        A("s_add_u32 s%d, s%d, s%d" % (sT0, sT0, sHOFF))
        for qs in range(4):
            for u in range(2):
                Z = vS + ((qs*2+u) & 1)*24; T = Z + 8
                regs = [aF + ((2*u+tt)*4 + qs)*4 + r for tt in range(2) for r in range(4)]
                for i, rg in enumerate(regs): A("v_accvgpr_read_b32 v%d, a%d" % (Z+i, rg))
                for i in range(8): A("v_mul_f32 v%d, s%d, v%d" % (T+i, sT2, Z+i))
                for i in range(8): A("v_exp_f32 v%d, v%d" % (T+i, T+i))
                for i in range(8): A("v_add_f32 v%d, 1.0, v%d" % (T+i, T+i))
                for i in range(8): A("v_rcp_f32 v%d, v%d" % (T+i, T+i))
                for i in range(8): A("v_mul_f32 v%d, v%d, v%d" % (Z+i, Z+i, T+i))
                for i in range(4): A("v_cvt_pk_bf16_f32 v%d, v%d, v%d" % (T+8+i, Z+2*i, Z+2*i+1))
                self.vm.issue("buffer_store_dwordx4 %s, v%d, s[%d:%d], s%d offen offset:%d sc1" % (v(T+8, 4), vLane, sH, sH+3, sT0, u*1024), ('hst',))
            if qs < 3: A("s_add_u32 s%d, s%d, %d" % (sT0, sT0, 56*1024))
    def phase1(self):
        A = self.A; vm = self.vm; lg = self.lg
        LA = 7
        for k in range(2):
            for f in self.w_ops(k): f()
            for f in self.x_ops(k): f()
        self.setup3()
        vm.wait(lambda l: l == ('W', 0)); A("s_barrier")
        self.prof.stamp("firstW")
        for t in range(LA): self.w_tile_reads(t)
        pre = {k: [] for k in range(16)}; post = {k: [] for k in range(16)}
        def X(j): return self.x_ops(j) if j < 16 else []
        def W(j): return self.w_ops(j) if j < 16 else []
        pre[0] = W(2) + X(2);  post[0] = W(3) + X(3)
        pre[1] = W(4) + X(4);  post[1] = W(5) + X(5)
        for k in range(2, 16):
            pre[k] = X(k+4) if k > 2 else []
            post[k] = W(k+4) if k == 2 else []
        pre[2] = X(6); post[2] = W(6) + W(7)
        for k in range(3, 16):
            pre[k] = X(k+4); post[k] = W(k+5)
        cl = self.copy_loads(); cs = self.copy_stores()
        post[2] += cl[0:2]; post[3] += cl[2:4]; post[4] += cl[4:6]
        kv = [('K', 0), ('K', 1), ('V', 0), ('K', 2), ('K', 3), ('V', 1), ('K', 4), ('K', 5), ('V', 2), ('K', 6), ('K', 7)]
        for i, (kind, unit) in enumerate(kv):
            post[5 + (i*7)//len(kv)] += self.kv_ops(kind, unit)
        post[13] += self.kv_ops('V', 3); post[14] += self.kv_ops('V', 4)
        post[12] += cs[0:2]; post[13] += cs[2:4]; post[14] += cs[4:6]
        self.sched = (pre, post)
        for k in range(16):
            epi = []
            vm.wait(lambda l: l == ('xn', k))
            for tau in range(12):
                t = 12*k + tau
                if tau == 5:
                    if k < 15: vm.wait(lambda l: l == ('W', k+1))
                    if k == 14: vm.wait(lambda l: l[0] in 'KV' and l != ('V', 3) and l != ('V', 4))
                    A("s_barrier")
                lg.wait(lambda l: l == ('Wt', t))
                if tau < 5: items, n0, n = pre[k], tau*4, 20
                else: items, n0, n = post[k], (tau-5)*4, 28
                for qs in range(4):
                    xb = a(aX + (k % 8)*16 + qs*4, 4)
                    if tau < 8:
                        i = (tau >> 1)*4 + qs
                        d = v(8*i + 4*(tau & 1), 4)
                    else: d = a(aF + ((tau-8)*4+qs)*4, 4)
                    A(mfma(d, v(vWf+4*tau, 4), xb, "0" if k == 0 else d))
                    pos = n0 + qs
                    for j, f in enumerate(items):
                        if (j*n)//max(1, len(items)) + (1 if len(items) < n else 0) == pos + (0 if len(items) >= n else 0) or (False): pass
                    for j, f in enumerate(items):
                        if min(n-1, (j*n)//len(items) + 1) == pos: f()
                    if qs == 1 and t + LA < 192: self.w_tile_reads(t + LA)
                    if k == 15:
                        if tau >= 2 and tau % 2 == 0 and qs == 1 and tau <= 8: epi += self.q_epi_ops(tau//2 - 1)
                        for _ in range(3):
                            if epi: A(epi.pop(0))
            while epi: A(epi.pop(0))
        self.prof.stamp("pass")
        if self.dbg == 'q': self.dump_q()
        self.f_epilogue()
        A.label("L2_att")
        self.prof.stamp("att")
    def late_dma(self):
        self.dma_unit('K', 4, ('K', 4)); self.dma_unit('K', 5, ('K', 5))
        self.dma_unit('V', 3, ('V', 3)); self.dma_unit('K', 6, ('K', 6))
        self.dma_unit('V', 4, ('V', 4)); self.dma_unit('K', 7, ('K', 7))
    def dump_q(self):
        A = self.A
        A("s_add_u32 s56, s40, 0x%x" % WS_DBG); A("s_addc_u32 s57, s41, 0"); A("s_mov_b32 s58, 0x1000000"); A("s_mov_b32 s59, 0x00020000")
        A("s_lshl_b32 s3, s2, 2"); A("s_add_u32 s3, s3, s%d" % sW); A("s_lshl_b32 s3, s3, 14")
        for f in range(16):
            self.vm.issue("buffer_store_dwordx4 %s, v%d, s[56:59], s3 offen offset:%d" % (v(vQ+4*f, 4), vLane, (f & 3)*1024), ('dbg',))
            if f & 3 == 3: A("s_add_u32 s3, s3, 4096")
    def k_reads(self, unit):
        slot = unit % 8; out = []
        for ks in range(4):
            for kt in range(2):
                out.append(("ds_read_b128 %s, v%d offset:%d" % (a(aK+(ks*2+kt)*4, 4), vKr+ks, slot*8192 + kt*4096), ('rd', 'K%d' % slot, unit)))
        return out
    def v_reads(self, unit):
        slot = unit % 8; out = []
        for dt in range(8):
            for hf in range(2):
                out.append(("ds_read_b64_tr_b16 %s, v%d offset:%d" % (a(aV+dt*4+2*hf, 2), vVr+dt, slot*8192 + hf*4096), ('rd', 'V%d' % slot, unit)))
        return out
    def qk_mfmas(self, sbuf, czero=False):
        out = []
        for ks in range(4):
            for kt in range(2):
                for qs in range(4):
                    d = v(vS+32*sbuf+(kt*4+qs)*4, 4)
                    c = d if ks else ("0" if czero else v(vNM+4*qs, 4))
                    out.append(mfma(d, a(aK+(ks*2+kt)*4, 4), v(vQ+(ks*4+qs)*4, 4), c))
        return out
    def pv_mfmas(self, pbuf, czero=False):
        out = []
        for dt in range(8):
            for qs in range(4):
                d = a(aO+(dt*4+qs)*4, 4)
                out.append(mfma(d, a(aV+dt*4, 4), v(vP+16*pbuf+4*qs, 4), "0" if czero else d))
        return out
    def sm_valu(self, buf, first=False):
        S = vS+32*buf; P = vP+16*buf
        seq = []
        for qs in range(4):
            for kt in range(2):
                for r in range(4): seq.append((qs, kt, r, S+(kt*4+qs)*4+r))
        out = []
        for i in range(len(seq)+2):
            if i < 32: out.append(("v_exp_f32 v%d, v%d" % (seq[i][3], seq[i][3]), 8))
            j = i-1
            if 0 <= j < 32:
                qs, kt, r, rg = seq[j]
                if first and kt == 0 and r == 0: out.append(("v_mov_b32 v%d, v%d" % (vL+qs, rg), 4))
                else: out.append(("v_add_f32 v%d, v%d, v%d" % (vL+qs, vL+qs, rg), 4))
                if r & 1: out.append(("v_cvt_pk_bf16_f32 v%d, v%d, v%d" % (P+qs*4+kt*2+(r >> 1), rg-1, rg), 4))
        return out
    def step(self, u, do_qk=True, do_pv=True, first_pv=False, first_sm=False, do_kread=True, do_dma=True, barrier=None, tagu=None, hooks=None, prebar=None):
        A = self.A
        M = []
        if do_qk: M += self.qk_mfmas((u+1) & 1)
        nqk = len(M)
        if do_pv: M += self.pv_mfmas((u-1) & 1, first_pv)
        n = len(M)
        extra = {}
        def put(pos, item): extra.setdefault(pos, []).append(item)
        if do_pv:
            vr = self.v_reads(u-1)
            span = (nqk - 8) if nqk else 1
            for i, it in enumerate(vr): put((i*span)//16 if nqk else -1, it)
        if do_kread:
            kr = self.k_reads(u+2)
            base = nqk if do_pv else max(0, n-26)
            for i, it in enumerate(kr): put(base + (i*24)//8 if do_pv else 4*i+3, it)
        if do_dma:
            pV = max(0, nqk - 7); pK = n - 7
            if not do_pv: pV = pK - 8
            assert abs(pV - pK) > 2
            put(pV, (["s_add_u32 m0, s%d, 0x%x" % (sW2K, LDS_V + ((u+5) % 8)*8192),
                      "buffer_load_dwordx4 v%d, s[%d:%d], s%d offen lds" % (vVd, sV, sV+3, sVo)], ('dma', 'V%d' % ((u+5) % 8), u+5)))
            put(pV+2, (["buffer_load_dwordx4 v%d, s[%d:%d], s%d offen offset:1024 lds" % (vVd+1, sV, sV+3, sVo),
                        "s_add_u32 s%d, s%d, 8192" % (sVo, sVo)], ('dma', 'V%d' % ((u+5) % 8), u+5)))
            put(pK, (["s_add_u32 m0, s%d, 0x%x" % (sW2K, LDS_K + (u % 8)*8192),
                      "buffer_load_dwordx4 v%d, s[%d:%d], s%d offen lds" % (vKd, sK, sK+3, sKo)], ('dma', 'K%d' % (u % 8), u+8)))
            put(pK+2, (["buffer_load_dwordx4 v%d, s[%d:%d], s%d offen offset:1024 lds" % (vKd+1, sK, sK+3, sKo),
                        "s_add_u32 s%d, s%d, 8192" % (sKo, sKo)], ('dma', 'K%d' % (u % 8), u+8)))
        F = self.sm_valu(u & 1, first_sm)
        ecost = {}
        for pos, items in extra.items():
            ecost[pos] = sum(4*(len(t) if isinstance(t, list) else 1) for t, _ in items)
        total = sum(c for _, c in F) + sum(c for p, c in ecost.items() if p >= 0)
        done = 0; fi = 0
        def emit_extra(pos):
            for t_, tg in extra.get(pos, []):
                if isinstance(t_, list):
                    for x in t_: A.i(x, tg if "buffer_load" in x else None)
                else: A.i(t_, tg)
        if -1 in extra:
            emit_extra(-1)
        for k, m in enumerate(M):
            if do_pv and k == nqk: A("s_waitcnt lgkmcnt(0)")
            A(m)
            for f in (hooks or {}).get(k, []): f()
            emit_extra(k); done += ecost.get(k, 0)
            target = total*(k+1)/n
            while fi < len(F) and done + F[fi][1]/2.0 <= target:
                A(F[fi][0]); done += F[fi][1]; fi += 1
        while fi < len(F): A(F[fi][0]); fi += 1
        if prebar: prebar()
        if barrier is not None:
            A("s_waitcnt vmcnt(%d) lgkmcnt(0)" % barrier); A("s_barrier")
        else:
            A("s_waitcnt lgkmcnt(0)")
    def allreduce_g(self, r, t, op):
        A = self.A
        A("v_mov_b32 v%d, v%d" % (t, r))
        A("v_permlane16_swap_b32 v%d, v%d" % (r, t))
        A("%s v%d, v%d, v%d" % (op, r, r, t))
        A("v_mov_b32 v%d, v%d" % (t, r))
        A("v_permlane32_swap_b32 v%d, v%d" % (r, t))
        A("%s v%d, v%d, v%d" % (op, r, r, t))
    def set_negm(self, mx):
        A = self.A
        for qs in range(4): self.allreduce_g(mx+qs, vT+8+qs, "v_max_f32")
        for qs in range(4):
            for r in range(4): A("v_sub_f32 v%d, 0, v%d" % (vNM+4*qs+r, mx+qs))
    def attention(self):
        A = self.A
        for t_, tg in self.k_reads(0): A.i(t_, tg)
        A("s_mov_b32 s%d, 0x%x" % (sKo, 8*8192))
        A("s_mov_b32 s%d, 0x%x" % (sVo, 5*8192))
        A("s_waitcnt lgkmcnt(0)")
        for m in self.qk_mfmas(0, czero=True): A(m)
        for t_, tg in self.k_reads(1): A.i(t_, tg)
        A("s_cmp_lg_u32 s%d, 0" % sFLAG)
        A("s_cbranch_scc1 L2_havem")
        mx = vT
        for qs in range(4):
            S = [vS+(kt*4+qs)*4+r for kt in range(2) for r in range(4)]
            A("v_max3_f32 v%d, v%d, v%d, v%d" % (mx+qs, S[0], S[1], S[2]))
            A("v_max3_f32 v%d, v%d, v%d, v%d" % (mx+qs, mx+qs, S[3], S[4]))
            A("v_max3_f32 v%d, v%d, v%d, v%d" % (mx+qs, mx+qs, S[5], S[6]))
            A("v_max_f32 v%d, v%d, v%d" % (mx+qs, mx+qs, S[7]))
        self.set_negm(mx)
        A.label("L2_havem")
        A("s_nop 7")
        for qs in range(4):
            for kt in range(2):
                for r in range(4):
                    rg = vS+(kt*4+qs)*4+r
                    A("v_add_f32 v%d, v%d, v%d" % (rg, rg, vNM+4*qs+r))
        A("s_waitcnt lgkmcnt(0)")
        A("s_barrier")
        self.step(0, do_pv=False, first_sm=True)
        A("s_mov_b32 s%d, 0" % sCNT)
        self.step(1, first_pv=True, barrier=16)
        A("s_branch L2_loop2")
        A.label("L2_loop")
        self.loop_start = len(A.code)
        self.step(1+8, barrier=16)
        A.label("L2_loop2")
        def c2_signal():
            A("s_cmp_eq_u32 s%d, s%d" % (sCNT, sSIG)); A("s_cbranch_scc0 L2_nosig")
            self.signal(sC2)
            A("s_mov_b32 s%d, 0xffff" % sSIG)
            A.label("L2_nosig")
        def c2_poll():
            A("s_cmp_eq_u32 s%d, 0" % sACQ); A("s_cbranch_scc0 L2_nopoll")
            self.vm.issue_uncounted("buffer_load_dword v%d, v%d, s[%d:%d], 0 offen sc1" % (vPollD, vPollA, sDBG, sDBG+3))
            A.label("L2_nopoll")
        def c2_check():
            A("s_cmp_eq_u32 s%d, 0" % sACQ); A("s_cbranch_scc0 L2_nochk")
            A("v_cmp_eq_u32 vcc, 32, v%d" % vPollD)
            A("s_cmp_eq_u64 vcc, -1"); A("s_cbranch_scc0 L2_nochk")
            A("buffer_inv sc1"); A("s_mov_b32 s%d, 1" % sACQ)
            A.label("L2_nochk")
        def c2_last():
            A("s_cmp_eq_u32 s%d, 0" % sACQ); A("s_cbranch_scc0 L2_acqd")
            A("s_cmp_eq_u32 s%d, 7" % sCNT); A("s_cbranch_scc0 L2_acqd")
            A("s_mov_b32 s%d, %d" % (sSPIN, SPIN_LIMIT))
            A.label("L2_spin2")
            A("buffer_load_dword v%d, v%d, s[%d:%d], 0 offen sc1" % (vPollD, vPollA, sDBG, sDBG+3))
            A("s_waitcnt vmcnt(0)")
            A("v_cmp_eq_u32 vcc, 32, v%d" % vPollD)
            A("s_cmp_eq_u64 vcc, -1"); A("s_cbranch_scc1 L2_got2")
            A("s_sub_u32 s%d, s%d, 1" % (sSPIN, sSPIN)); A("s_cmp_lg_u32 s%d, 0" % sSPIN); A("s_cbranch_scc1 L2_spin2")
            A.label("L2_got2")
            A("buffer_inv sc1"); A("s_waitcnt vmcnt(0)"); A("s_mov_b32 s%d, 1" % sACQ)
            A.label("L2_acqd")
        for p in range(2, 9):
            hooks = {}
            if p == 2: c2_poll()
            if p == 3: c2_signal()
            if p == 7: c2_check()
            self.step(p+8, barrier=16 if p & 1 else None, prebar=c2_last if p == 5 else None)
            if p == 6:
                A("s_cmp_eq_u32 s%d, 7" % sCNT)
                A("s_cbranch_scc1 L2_tail")
        A("s_add_u32 s%d, s%d, 1" % (sCNT, sCNT))
        A("s_branch L2_loop")
        A.label("L2_tail")
        vm = self.vm
        vm.preload([('kv',)]*20); vm.cap = (58, 44)
        self.b_base(sBH0, 56*1024)
        bl = []
        for j in range(6): bl += self.b_ops(j)
        hooks = {}
        for i, f in enumerate(bl): hooks.setdefault((i*31)//len(bl), []).append(f)
        def tail_wait(): vm.wait(lambda l: l == ('kv',), "lgkmcnt(0)"); A("s_barrier")
        self.step(63, do_qk=False, do_kread=False, do_dma=False, barrier=None, hooks=hooks)
        tail_wait()
        for t_, tg in self.v_reads(63): A.i(t_, tg)
        wl = self.w3_ops(0) + self.w3_ops(1)
        A("s_waitcnt lgkmcnt(0)")
        for i, m in enumerate(self.pv_mfmas(63 & 1)):
            A(m)
            if i % 3 == 1 and wl: wl.pop(0)()
        while wl: wl.pop(0)()
    def b_base(self, sbase, stride):
        A = self.A
        A("s_mov_b32 s%d, s%d" % (sB, sbase))
        for qs in range(1, 4): A("s_add_u32 s%d, s%d, %d" % (sB+qs, sB+qs-1, stride))
    def b_ops(self, j):
        A = self.A; jj = j if j < NF else j - NF; out = []
        for qs in range(4):
            def f(qs=qs):
                self.vm.issue("buffer_load_dwordx4 %s, v%d, s[%d:%d], s%d offen offset:%d%s" % (a(BREG[j % 8]+qs*4, 4), vLane, sXN, sXN+3, sB+qs, (jj & 3)*1024, "" if j < NF else " sc1"), ('B', j))
                if jj & 3 == 3: A("s_add_u32 s%d, s%d, 4096" % (sB+qs, sB+qs))
            out.append(f)
        return out
    def w3_ops(self, j):
        A = self.A; slot = j % 8; out = []
        sbase, jj = (sBW2, j) if j < NF else (sBWO, j - NF)
        for p in range(4):
            def f(p=p):
                if p == 0:
                    A("s_add_u32 m0, s%d, 0x%x" % (sLB3, slot*4096))
                    A("s_add_u32 s%d, s%d, 0x%x" % (sSo, sbase, jj*4096))
                self.vm.issue("buffer_load_dwordx4 v%d, s[%d:%d], s%d offen offset:%d lds" % (vLane, sW3, sW3+3, sSo, p*1024), ('W3', j), ('dma', 'p_W%d' % slot, j))
            out.append(f)
        return out
    def w3_reads(self, j):
        slot = j % 8; par = j & 1; out = []
        for tau in range(4):
            for hp in range(2):
                out.append(("ds_read_b64_tr_b16 %s, v%d offset:%d" % (v(vWf3+16*par+4*tau+2*hp, 2), vWr3+tau, slot*4096 + hp*2048), ('rd', 'p_W%d' % slot, j)))
        return out
    def epilogue(self):
        A = self.A
        for qs in range(4): self.allreduce_g(vL+qs, vT+qs, "v_add_f32")
        A("s_mov_b32 s%d, %s" % (sT2, lit(2.0**120)))
        A("s_mov_b64 s[56:57], -1")
        for qs in range(4):
            A("v_cmp_gt_f32 vcc, s%d, v%d" % (sT2, vL+qs))
            A("s_and_b64 s[56:57], s[56:57], vcc")
        for qs in range(4): A("v_rcp_f32 v%d, v%d" % (vL+qs, vL+qs))
        mx = vT+4
        A("v_mov_b32 v%d, 0" % mx)
        A("s_lshl_b32 s%d, s%d, 12" % (sT0, sHEAD))
        A("s_add_u32 s%d, s%d, s%d" % (sT0, sT0, sOOFF))
        n = 0
        pf = []
        for j in range(2, LOOK): pf += self.w3_ops(j)
        pf[8:8] = self.b_ops(6)
        for qs in range(4):
            for t in range(4):
                T = vS + (n % 4)*16; n += 1
                for tt in range(2):
                    for r in range(4):
                        A("v_accvgpr_read_b32 v%d, a%d" % (T+tt*4+r, aO+((2*t+tt)*4+qs)*4+r))
                for i in range(8): A("v_mul_f32 v%d, v%d, v%d" % (T+i, T+i, vL+qs))
                for i in range(4): A("v_maximum3_f32 v%d, v%d, |v%d|, |v%d|" % (mx, mx, T+2*i, T+2*i+1))
                for i in range(4): A("v_cvt_pk_bf16_f32 v%d, v%d, v%d" % (T+8+i, T+2*i, T+2*i+1))
                self.vm.issue("buffer_store_dwordx4 %s, v%d, s[%d:%d], s%d offen offset:%d sc1" % (v(T+8, 4), vLane, sO, sO+3, sT0, t*1024), ('ost',))
                for _ in range(2 if 'pfepi' in self.opt else 0):
                    if pf: pf.pop(0)()
            if qs < 3: A("s_add_u32 s%d, s%d, %d" % (sT0, sT0, 128*1024))
        while pf: pf.pop(0)()
        A("s_cmp_lg_u32 s%d, 0" % sFLAG)
        A("s_cbranch_scc1 L3_go")
        A("s_mov_b32 s%d, 0x7f800000" % sT2)
        A("v_cmp_gt_f32 vcc, s%d, v%d" % (sT2, mx))
        A("s_and_b64 s[56:57], s[56:57], vcc")
        A("s_cmp_eq_u64 s[56:57], -1")
        A("s_cselect_b32 s%d, 0, 1" % sT1)
        A("v_mov_b32 v%d, s%d" % (vT+6, sT1))
        A("v_mov_b32 v%d, s%d" % (vT+7, sW))
        A("v_lshlrev_b32 v%d, 2, v%d" % (vT+7, vT+7))
        A("v_add_u32 v%d, 0x%x, v%d" % (vT+7, LDS_VOTE, vT+7))
        A("ds_write_b32 v%d, v%d" % (vT+7, vT+6))
        A("v_mov_b32 v%d, 0x%x" % (vT+7, LDS_VOTE))
        A("s_waitcnt lgkmcnt(0)")
        A("s_barrier")
        A("ds_read_b128 %s, v%d" % (v(vT+8, 4), vT+7))
        A("s_waitcnt lgkmcnt(0)")
        A("v_or_b32 v%d, v%d, v%d" % (vT+8, vT+8, vT+9))
        A("v_or3_b32 v%d, v%d, v%d, v%d" % (vT+8, vT+8, vT+10, vT+11))
        A("v_readfirstlane_b32 s%d, v%d" % (sT1, vT+8))
        A("s_cmp_eq_u32 s%d, 0" % sT1)
        A("s_cbranch_scc0 L2_fb")
        A.label("L3_go")
    def phase3(self):
        A = self.A; vm = self.vm
        vm.cap = None
        vm.wait(lambda l: l == ('W3', 0))
        for t_, tg in self.w3_reads(0): A.i(t_, tg)
        pollpos = None
        for j in range(NK):
            par = j & 1
            if j == NF:
                self.prof.stamp("ffn2")
                A("s_cmp_eq_u32 s%d, 0" % sW); A("s_cbranch_scc0 L3_rdy")
                vm.wait_pos(pollpos)
                A("v_readfirstlane_b32 s%d, v%d" % (sT1, vPollD)); A("s_cmp_ge_u32 s%d, 32" % sT1); A("s_cbranch_scc1 L3_rdy")
                A("s_mov_b32 s%d, %d" % (sSPIN, SPIN_LIMIT))
                A.label("L3_spin")
                A("buffer_load_dword v%d, off, s[%d:%d], s%d sc1" % (vPollD, sDBG, sDBG+3, sC3))
                A("s_waitcnt vmcnt(0)")
                A("v_readfirstlane_b32 s%d, v%d" % (sT1, vPollD)); A("s_cmp_ge_u32 s%d, 32" % sT1); A("s_cbranch_scc1 L3_rdy")
                A("s_sub_u32 s%d, s%d, 1" % (sSPIN, sSPIN)); A("s_cmp_lg_u32 s%d, 0" % sSPIN); A("s_cbranch_scc1 L3_spin")
                A.label("L3_rdy")
                A("s_barrier")
                self.b_base(sBO0, 128*1024)
                for jb in range(NF, NF + LOOK):
                    for f in self.b_ops(jb): f()
                self.prof.stamp("poll")
            if j+1 < NK: vm.wait(lambda l: l == ('W3', j+1) or l == ('B', j), "lgkmcnt(0)")
            else: vm.wait(lambda l: l == ('B', j), "lgkmcnt(0)")
            if j == 6:
                vm.wait(lambda l: l == ('ost',))
                A("s_barrier")
                A("s_cmp_eq_u32 s%d, 0" % sW); A("s_cbranch_scc0 L3_nosig")
                self.signal(sC3)
                A.label("L3_nosig")
                self.prof.stamp("sig")
            if j == NF - 2:
                A("s_cmp_eq_u32 s%d, 0" % sW); A("s_cbranch_scc0 L3_nopoll")
                pollpos = vm.issue_uncounted("buffer_load_dword v%d, off, s[%d:%d], s%d sc1" % (vPollD, sDBG, sDBG+3, sC3))
                A.label("L3_nopoll")
            reads = self.w3_reads(j+1) if j+1 < NK else []
            first = j == 0 or j == NF
            loads = []
            jn = j + LOOK
            if jn < NK:
                loads += self.w3_ops(jn)
                if jn < NF or j >= NF: loads += self.b_ops(jn)
            if jn == NK:
                for tau2 in range(4):
                    loads.append(lambda tau2=tau2: vm.issue("buffer_load_dwordx2 %s, v%d, s[%d:%d], 0 offen offset:%d" % (v(vXv+2*tau2, 2), vXo, sX, sX+3, tau2*32), ('x',)))
            k = 0
            for tau in range(4):
                for qs in range(4):
                    d = v(vG+(tau*4+qs)*4, 4) if j < NF else a(aS3+(tau*4+qs)*4, 4)
                    A(mfma(d, v(vWf3+16*par+4*tau, 4), a(BREG[j % 8]+qs*4, 4), "0" if first else d))
                    if k < len(reads): A.i(*reads[k])
                    if k >= 8 and loads: loads.pop(0)()
                    k += 1
            while loads: loads.pop(0)()
        self.prof.stamp("main")
    def reduce3(self):
        A = self.A; vm = self.vm
        A("s_lshl_b32 s3, s%d, 13" % sW); A("v_add_u32 v%d, s3, v%d" % (vRed, vLane))
        A("s_lshl_b32 s3, s%d, 15" % sW); A("v_add_u32 v%d, s3, v%d" % (vRed+1, vLane))
        A("s_barrier")
        for dst in range(4):
            if dst: A("v_add_u32 v%d, 0x8000, v%d" % (vRed, vRed))
            for sg in range(2):
                for tau in range(4):
                    src = a(aS3+(tau*4+dst)*4, 4) if sg == 0 else v(vG+(tau*4+dst)*4, 4)
                    A("ds_write_b128 v%d, %s offset:%d" % (vRed, src, sg*4096 + tau*1024))
        A("s_waitcnt lgkmcnt(0)")
        A("s_barrier")
        R = vR3
        for src in range(4):
            for sg in range(2):
                for tau in range(4):
                    A("ds_read_b128 %s, v%d offset:%d" % (v(R+src*32+sg*16+tau*4, 4), vRed+1, src*8192 + sg*4096 + tau*1024))
            if src == 1:
                A("s_waitcnt lgkmcnt(0)")
        A("s_waitcnt lgkmcnt(0)")
        for i in range(32): A("v_add_f32 v%d, v%d, v%d" % (R+i, R+i, R+32+i))
        for i in range(32): A("v_add_f32 v%d, v%d, v%d" % (R+64+i, R+64+i, R+96+i))
        for i in range(32): A("v_add_f32 v%d, v%d, v%d" % (R+i, R+i, R+64+i))
        S = R; G = R+16; T = R+32; U = R+48
        def rnd(base, n, tmp):
            for i in range(0, n, 2): A("v_cvt_pk_bf16_f32 v%d, v%d, v%d" % (tmp+i//2, base+i, base+i+1))
            for i in range(0, n, 2):
                A("v_lshlrev_b32 v%d, 16, v%d" % (base+i, tmp+i//2))
                A("v_and_b32 v%d, 0xffff0000, v%d" % (base+i+1, tmp+i//2))
        rnd(G, 16, T); rnd(S, 16, U)
        A("s_mov_b32 s%d, %s" % (sT2, lit(-math.log2(math.e))))
        for i in range(16): A("v_mul_f32 v%d, s%d, v%d" % (T+i, sT2, G+i))
        for i in range(16): A("v_exp_f32 v%d, v%d" % (T+i, T+i))
        for i in range(16): A("v_add_f32 v%d, 1.0, v%d" % (T+i, T+i))
        for i in range(16): A("v_rcp_f32 v%d, v%d" % (T+i, T+i))
        for i in range(16): A("v_mul_f32 v%d, v%d, v%d" % (G+i, G+i, T+i))
        rnd(G, 16, T)
        for i in range(16): A("v_mul_f32 v%d, v%d, v%d" % (S+i, S+i, G+i))
        rnd(S, 16, T)
        vm.wait(lambda l: l == ('x',))
        for i in range(8):
            A("v_lshlrev_b32 v%d, 16, v%d" % (G+2*i, vXv+i))
            A("v_and_b32 v%d, 0xffff0000, v%d" % (G+2*i+1, vXv+i))
        for i in range(16): A("v_add_f32 v%d, v%d, v%d" % (S+i, S+i, G+i))
        for i in range(8): A("v_cvt_pk_bf16_f32 v%d, v%d, v%d" % (T+i, S+2*i, S+2*i+1))
        for tau in range(4):
            A("buffer_store_dwordx2 %s, v%d, s[%d:%d], 0 offen offset:%d" % (v(T+2*tau, 2), vXo, sOUT, sOUT+3, tau*32))
    def fallback(self):
        A = self.A
        vm = self.vm
        A.label("L2_fb")
        vm.cap = None; vm.ops = []; vm.done = 0
        A("s_waitcnt vmcnt(0) lgkmcnt(0)")
        A("s_barrier")
        mx = vT
        for qs in range(4): A("v_mov_b32 v%d, 0xff800000" % (mx+qs))
        A("s_mov_b32 s%d, 0" % sKo)
        A.label("L2_mx")
        A("s_add_u32 m0, s%d, 0x%x" % (sW2K, LDS_K))
        A("s_nop 0")
        A("buffer_load_dwordx4 v%d, s[%d:%d], s%d offen lds" % (vKd, sK, sK+3, sKo))
        A("buffer_load_dwordx4 v%d, s[%d:%d], s%d offen offset:1024 lds" % (vKd+1, sK, sK+3, sKo))
        A("s_waitcnt vmcnt(0)")
        A("s_barrier")
        for t_, tg in self.k_reads(0): A(t_)
        A("s_waitcnt lgkmcnt(0)")
        A("s_barrier")
        for m in self.qk_mfmas(0, czero=True): A(m)
        for qs in range(4):
            S = [vS+(kt*4+qs)*4+r for kt in range(2) for r in range(4)]
            A("v_max3_f32 v%d, v%d, v%d, v%d" % (mx+qs, mx+qs, S[0], S[1]))
            A("v_max3_f32 v%d, v%d, v%d, v%d" % (mx+qs, mx+qs, S[2], S[3]))
            A("v_max3_f32 v%d, v%d, v%d, v%d" % (mx+qs, mx+qs, S[4], S[5]))
            A("v_max3_f32 v%d, v%d, v%d, v%d" % (mx+qs, mx+qs, S[6], S[7]))
        A("s_add_u32 s%d, s%d, 8192" % (sKo, sKo))
        A("s_cmp_lt_u32 s%d, 0x80000" % sKo)
        A("s_cbranch_scc1 L2_mx")
        self.set_negm(mx)
        A("s_mov_b32 s%d, 1" % sFLAG)
        vm.ops = []; vm.done = 0
        for u in range(4): self.dma_unit('K', u, ('K', u))
        for u in range(3): self.dma_unit('V', u, ('V', u))
        A("s_waitcnt vmcnt(0)")
        A("s_barrier")
        self.late_dma()
        A("s_branch L2_att")
    def gen(self):
        A = self.A
        P = self.prof
        P.stamp("start")
        self.setup()
        self.phase1()
        self.attention()
        P.stamp("attend")
        self.epilogue()
        P.stamp("epi")
        self.phase3()
        self.reduce3()
        if P.on:
            P.stamp("end")
            P.dump(sXN, "s2", "s%d" % sW, vT)
        A("s_endpgm")
        self.fallback()
        A.label("L2_end")
        A("s_endpgm")
        B = finalize(A.code, name="k23")
        self.final = B
        return kernel_head(self.name) + B.text() + kernel_block(self.name, 512, 256, sgprs=102)
def check(k):
    import copy
    code = k.final.code
    idx = {x.label: i for i, x in enumerate(code) if x.kind == "label"}
    lo, hi = idx["L2_loop"], idx["L2_tail"]
    inloop = set(id(x) for x in code[lo:hi])
    alias = {}
    for sl in range(8):
        alias['p_W%d' % sl] = ['K%d' % (sl >> 1), 'K%d' % (4 + (sl >> 1)), 'V%d' % (sl >> 1)] + ['W%d' % q for q in range(6)]
    T, F = True, False
    cases = {
      "wave0": {"L2_tail": [F]*7+[T], "L2_nosig": [T, F]+[T]*6, "L2_nopoll": [F]*3+[T]*5, "L2_nochk": [F, T, F, T, F, F]+[T]*5, "L2_acqd": [F, T, F, T, F, T]+[T]*5,
                "L3_go": [F], "L2_fb": [F], "L3_rdy": [F, T], "L3_nosig": [F], "L3_nopoll": [F], "L2_havem": [F]},
      "wave0-slow": {"L2_tail": [F]*7+[T], "L2_nosig": [T, F]+[T]*6, "L2_nopoll": [F]*8, "L2_nochk": [F, T]*7, "L2_acqd": [F, T]*7+[F, F], "L2_spin2": [T, F], "L2_got2": [F, T],
                "L3_go": [F], "L2_fb": [F], "L3_rdy": [F, F, F, T], "L3_spin": [T], "L3_nosig": [F], "L3_nopoll": [F], "L2_havem": [F]},
      "waveN": {"L2_tail": [F]*7+[T], "L2_nosig": [T]*8, "L2_nopoll": [T]*8, "L2_nochk": [T]*8, "L2_acqd": [T]*8,
                "L3_go": [F], "L2_fb": [F], "L3_rdy": [T], "L3_nosig": [T], "L3_nopoll": [T], "L2_havem": [F]},
      "fallback": {"L2_tail": ([F]*7+[T])*2, "L2_nosig": [T]*16, "L2_nopoll": [T]*16, "L2_nochk": [T]*16, "L2_acqd": [T]*16,
                "L3_go": [F, T], "L2_fb": [T], "L3_rdy": [T], "L3_nosig": [T], "L3_nopoll": [T], "L2_havem": [F, T], "L2_mx": [T, F]},
    }
    ok = True
    for name, dec in cases.items():
        tr = make_trace(code, dec)
        out = []; n = 0; rnd = 0
        for x in tr:
            if x.kind == "label" and x.label == "L2_loop": n += 1
            if x.kind == "label" and x.label == "L2_att": n = 0
            if x.kind == "label" and x.label == "L2_mx": rnd = 1000
            if x.tag and x.tag[0] in ("dma", "rd"):
                y = copy.copy(x); g = x.tag[2]
                if id(x) in inloop: g = g - 8 + 8*n
                y.tag = (x.tag[0], x.tag[1], g + rnd); out.append(y)
            else: out.append(x)
        _, probs = check_hazards(out)
        errs = check_waits(out, alias=alias)
        print("%-10s trace %d mfma %d hazards %d %s wait errs %d end=%s" % (name, len(out), sum(1 for x in out if x.kind == "mfma"), len(probs), probs[:3], len(errs), out[-1].text))
        for e in errs[:20]: print("    ", e)
        ok &= not probs and not errs
    return ok
if __name__ == "__main__":
    k = K23(prof="prof" in sys.argv)
    t = k.gen()
    print(len(t.splitlines()), "lines")
    check(k)
```

```python
import re
from collections import deque

def v(n, c=1): return "v%d" % n if c == 1 else "v[%d:%d]" % (n, n + c - 1)
def a(n, c=1): return "a%d" % n if c == 1 else "a[%d:%d]" % (n, n + c - 1)
def s(n, c=1): return "s%d" % n if c == 1 else "s[%d:%d]" % (n, n + c - 1)

REG_RE = re.compile(r"^(-|\|)?(abs\()?([vas])(\d+|\[(\d+):(\d+)\])\)?\|?$")
def regs_of(tok):
    tok = tok.strip()
    if tok in ("vcc", "exec"): return {(tok, 0), (tok, 1)}
    if tok == "vcc_lo": return {("vcc", 0)}
    if tok == "vcc_hi": return {("vcc", 1)}
    if tok == "exec_lo": return {("exec", 0)}
    if tok == "exec_hi": return {("exec", 1)}
    if tok == "m0": return {("m0", 0)}
    t = tok.replace("|", "").replace("abs(", "").replace(")", "")
    if t.startswith("-"): t = t[1:]
    m = re.match(r"^([vas])(\d+)$", t)
    if m: return {(m.group(1), int(m.group(2)))}
    m = re.match(r"^([vas])\[(\d+):(\d+)\]$", t)
    if m: return {(m.group(1), k) for k in range(int(m.group(2)), int(m.group(3)) + 1)}
    return set()

TRANS = ("v_exp_f32", "v_log_f32", "v_rcp_f32", "v_rsq_f32", "v_sqrt_f32", "v_sin_f32", "v_cos_f32", "v_rcp_iflag_f32")
NO_DST_S = ("s_cmp", "s_waitcnt", "s_barrier", "s_branch", "s_cbranch", "s_nop", "s_setprio", "s_sleep", "s_endpgm", "s_bitcmp", "s_setreg", "s_sendmsg")
SCC_WR = ("s_add", "s_sub", "s_lshl", "s_lshr", "s_ashr", "s_and", "s_or", "s_xor", "s_andn2", "s_orn2", "s_cmp", "s_min", "s_max", "s_not", "s_bitcmp", "s_bfe", "s_addk", "s_abs", "s_nand", "s_nor", "s_xnor")

class I:
    __slots__ = ("text", "op", "ops", "mods", "rd", "wr", "kind", "tag", "passes", "nop", "note", "srcC", "srcAB", "label", "target")
    def __init__(self, text, tag=None, note=None):
        self.text = text; self.tag = tag; self.note = note
        self.rd = set(); self.wr = set(); self.passes = 0; self.nop = 0
        self.srcC = set(); self.srcAB = set(); self.label = None; self.target = None
        t = text.strip()
        if t.endswith(":") and " " not in t:
            self.kind = "label"; self.op = ""; self.label = t[:-1]; self.ops = []; self.mods = ""; return
        if t.startswith(";") or t.startswith(".") or t == "":
            self.kind = "dir"; self.op = ""; self.ops = []; self.mods = ""; return
        parts = t.split(None, 1)
        op = parts[0]; self.op = op
        rest = parts[1] if len(parts) > 1 else ""
        ops = []; cur = ""; depth = 0
        for ch in rest:
            if ch in "[(": depth += 1
            if ch in "])": depth -= 1
            if ch == "," and depth == 0: ops.append(cur.strip()); cur = ""
            else: cur += ch
        mods = ""
        if cur.strip():
            c = cur.strip()
            sp = c.split(None, 1)
            if op.startswith("s_waitcnt"):
                ops.append(c)
            else:
                ops.append(sp[0]); mods = sp[1] if len(sp) > 1 else ""
        self.ops = ops; self.mods = mods
        R = [regs_of(o) for o in ops]
        base = re.sub(r"_(e32|e64|dpp|sdwa)$", "", op)
        if op.startswith("v_mfma"):
            self.kind = "mfma"
            self.passes = 8 if "32x32" in op else 4
            if "32x32x2_f32" in op or "32x32x1" in op: self.passes = 16
            self.wr = set(R[0]); self.srcAB = R[1] | R[2]; self.srcC = set(R[3]); self.rd = self.srcAB | self.srcC
        elif op.startswith("v_"):
            self.kind = "trans" if base in TRANS else "valu"
            if base.startswith("v_cmpx"):
                self.wr = R[0] | {("exec", 0), ("exec", 1)}; self.rd = set().union(*R[1:])
            elif base.startswith("v_cmp"):
                self.wr = set(R[0]); self.rd = set().union(*R[1:])
            elif base.startswith("v_permlane") and "swap" in base:
                self.wr = R[0] | R[1]; self.rd = R[0] | R[1]
            elif base in ("v_add_co_u32", "v_sub_co_u32", "v_subrev_co_u32"):
                self.wr = R[0] | R[1]; self.rd = set().union(*R[2:])
            elif base in ("v_addc_co_u32", "v_subb_co_u32"):
                self.wr = R[0] | R[1]; self.rd = set().union(*R[2:])
            elif base in ("v_fmac_f32", "v_dot2c_f32_bf16", "v_pk_fmac_f16", "v_mac_f32"):
                self.wr = set(R[0]); self.rd = set().union(*R)
            elif base == "v_writelane_b32":
                self.wr = set(R[0]); self.rd = set().union(*R)
            else:
                self.wr = set(R[0]); self.rd = set().union(*R[1:]) if len(R) > 1 else set()
                if base == "v_cndmask_b32" and len(ops) == 3: self.rd |= {("vcc", 0), ("vcc", 1)}
            if "dpp" in op or any(k in mods for k in ("row_shr", "row_shl", "row_ror", "quad_perm", "row_bcast", "row_mirror", "row_half_mirror", "wave_")):
                self.note = (self.note or "") + " DPP"
                self.rd |= self.wr if "bound_ctrl" not in mods else set()
            self.rd |= {("exec", 0), ("exec", 1)}
        elif op.startswith("ds_"):
            self.kind = "ds"
            if op.startswith("ds_read") or op.startswith("ds_bpermute") or op.startswith("ds_permute") or op.startswith("ds_swizzle"):
                self.wr = set(R[0]); self.rd = set().union(*R[1:])
            else:
                self.rd = set().union(*R)
            self.rd |= {("exec", 0), ("exec", 1)}
        elif op.startswith("buffer_") or op.startswith("global_"):
            self.kind = "vmem"
            lds = (" lds" in (" " + mods)) or "_lds_" in op
            if op in ("buffer_wbl2", "buffer_inv"):
                pass
            elif lds:
                self.rd = set().union(*R) | {("m0", 0)}; self.note = (self.note or "") + " DMA"
            elif "_load" in op:
                self.wr = set(R[0]); self.rd = set().union(*R[1:])
            elif "atomic" in op:
                if "sc0" in mods and op.startswith("global_") and len(ops) == 4:
                    self.wr = set(R[0]); self.rd = set().union(*R[1:])
                elif "sc0" in mods and op.startswith("buffer_"):
                    self.wr = set(R[0]); self.rd = set().union(*R)
                else:
                    self.rd = set().union(*R)
            else:
                self.rd = set().union(*R); self.note = (self.note or "") + " STORE"
            self.rd |= {("exec", 0), ("exec", 1)}
        elif op.startswith("s_load") or op.startswith("s_buffer_load") or op in ("s_memtime", "s_memrealtime"):
            self.kind = "smem"; self.wr = set(R[0]); self.rd = set().union(*R[1:]) if len(R) > 1 else set()
        elif op.startswith("s_"):
            if op == "s_waitcnt": self.kind = "wait"
            elif op == "s_barrier": self.kind = "barrier"
            elif op == "s_nop": self.kind = "nop"; self.nop = int(ops[0], 0)
            elif op == "s_branch" or op.startswith("s_cbranch"):
                self.kind = "branch"; self.target = ops[0]
                if "scc" in op: self.rd = {("scc", 0)}
                if "vcc" in op: self.rd = {("vcc", 0), ("vcc", 1)}
                if "exec" in op: self.rd = {("exec", 0), ("exec", 1)}
            elif op == "s_endpgm": self.kind = "end"
            else:
                self.kind = "salu"
                if any(op.startswith(p) for p in NO_DST_S):
                    self.rd = set().union(*R) if R else set()
                elif op.startswith("s_getreg"):
                    self.wr = set(R[0])
                elif "saveexec" in op:
                    self.wr = R[0] | {("exec", 0), ("exec", 1)}; self.rd = set().union(*R[1:]) | {("exec", 0), ("exec", 1)}
                else:
                    self.wr = set(R[0]); self.rd = set().union(*R[1:]) if len(R) > 1 else set()
                    if op.startswith("s_addk") or op.startswith("s_mulk") or op.startswith("s_cmov"): self.rd |= R[0]
                if any(op.startswith(p) for p in SCC_WR) or "saveexec" in op: self.wr |= {("scc", 0)}
                if op.startswith("s_cselect") or op.startswith("s_addc") or op.startswith("s_subb") or op.startswith("s_cmov"): self.rd |= {("scc", 0)}
        else:
            raise ValueError("unknown instr: " + text)
    def states(self):
        if self.kind in ("label", "dir"): return 0
        if self.kind == "nop": return self.nop + 1
        return 1
    def is_valu(self): return self.kind in ("valu", "trans")
    def __repr__(self): return self.text

class Asm:
    def __init__(self): self.code = []
    def i(self, text, tag=None, note=None):
        x = I(text, tag, note); self.code.append(x); return x
    def __call__(self, text, tag=None): return self.i(text, tag)
    def lines(self, text):
        for l in text.strip().splitlines():
            l = l.split(";")[0].strip() if not l.strip().startswith(";") else l.strip()
            if l: self.i(l)
    def label(self, name): self.i(name + ":")
    def comment(self, t): self.i("; " + t)
    def extend(self, lst): self.code.extend(lst)
    def text(self):
        out = []
        for x in self.code:
            if x.kind == "label": out.append(x.text)
            else: out.append("    " + x.text)
        return "\n".join(out) + "\n"

def only(regs, kinds): return {r for r in regs if r[0] in kinds}

def required_states(p, c):
    need = 0
    pv = only(p.wr, "va");
    if p.kind == "mfma":
        P = p.passes
        idx = {2: 0, 4: 1, 8: 2, 16: 3}[P]
        if c.kind == "mfma":
            if pv & c.srcAB: need = max(need, [5, 8, 12, 20][idx])
            if pv & c.srcC:
                if c.srcC == pv and c.passes == P: need = max(need, [2, 0, 0, 0][idx])
                else: need = max(need, [4, 6, 10, 18][idx])
            elif pv & c.wr: need = max(need, [4, 6, 10, 18][idx])
        elif c.kind in ("valu", "trans"):
            if pv & (c.rd | c.wr): need = max(need, [5, 8, 12, 20][idx])
            if p.srcC & c.wr: need = max(need, [1, 3, 7, 15][idx])
        elif c.kind in ("ds", "vmem"):
            if pv & (c.rd | c.wr): need = max(need, [5, 8, 12, 20][idx])
    if p.is_valu():
        if c.kind == "mfma" and pv & c.rd: need = max(need, 2)
        if p.kind == "trans" and c.is_valu() and c.kind != "trans" and pv & c.rd: need = max(need, 1)
        if p.kind == "trans" and c.kind in ("trans",) and pv & c.rd: need = max(need, 1)
        ps = only(p.wr, ("s", "vcc"))
        ps = {r for r in p.wr if r[0] in ("s", "vcc")}
        if ps:
            if c.kind == "vmem" and ps & c.rd: need = max(need, 5)
            if c.is_valu() and ps & c.rd:
                need = max(need, 4 if c.op.startswith(("v_readlane", "v_writelane")) else 2)
            if c.kind in ("salu", "branch", "smem") and ps & c.rd: need = max(need, 4 if c.kind != "branch" else 5)
        if c.is_valu() and pv & c.rd:
            if c.op.startswith(("v_readlane", "v_readfirstlane")): need = max(need, 1)
            if c.op.startswith("v_permlane"): need = max(need, 2)
            if c.note and "DPP" in c.note: need = max(need, 2)
        if ("exec", 0) in p.wr or ("exec", 1) in p.wr:
            if c.kind == "mfma": need = max(need, 4)
            if c.is_valu(): need = max(need, 5)
    if p.kind == "salu" and ("m0", 0) in p.wr and c.kind in ("vmem", "ds") and ("m0", 0) in c.rd: need = max(need, 1)
    if p.kind == "salu" and any(r[0] == "exec" for r in p.wr) and c.kind == "mfma": need = max(need, 1)
    if p.kind == "vmem" and p.note and "STORE" in p.note and ("x4" in p.op or "x3" in p.op):
        data = regs_of(p.ops[0] if p.op.startswith("buffer") else p.ops[1])
        if data & c.wr: need = max(need, 2)
    if p.kind == "ds" and p.op.startswith("ds_write") and ("b128" in p.op or "b96" in p.op):
        data = set().union(*[regs_of(o) for o in p.ops[1:]])
        if data & c.wr and c.is_valu(): need = max(need, 2)
    return need

def check_hazards(trace, fix=False, window=24):
    out = []; problems = []
    for c in trace:
        if c.kind in ("label", "dir"):
            out.append(c); continue
        dist = 0; worst = 0; who = None
        for p in reversed(out[-(window * 3):]):
            if p.kind in ("label", "dir"): continue
            need = required_states(p, c)
            if need > dist and need - dist > worst: worst = need - dist; who = p
            dist += p.states()
            if dist >= 21: break
        if worst > 0:
            problems.append((who.text, c.text, worst))
            if fix:
                n = worst
                while n > 0:
                    k = min(n, 16); out.append(I("s_nop %d" % (k - 1))); n -= k
        out.append(c)
    return (out if fix else None), problems

def parse_wait(x):
    t = x.text
    vm = re.search(r"vmcnt\((\d+)\)", t); lg = re.search(r"lgkmcnt\((\d+)\)", t)
    return (int(vm.group(1)) if vm else None, int(lg.group(1)) if lg else None)

def check_waits(trace, verbose=False, alias=None):
    errs = []
    vm = deque(); lg = deque()
    landed = {}
    dma_total = {}; dma_done = {}; dma_visible = set()
    rd_out = {}
    reads_pending = {}
    reads_done_nobar = set()
    region_last_read = {}
    for k, x in enumerate(trace):
        if x.kind in ("label", "dir"): continue
        touched = only(x.rd | x.wr, "vas")
        for q, nm in ((vm, "vm"), (lg, "lgkm")):
            for e in q:
                if e["dst"] & touched and not (x.kind == "wait"):
                    errs.append("%s pending dst touched by '%s' (#%d) <- '%s'" % (nm, x.text, k, e["i"].text))
        if x.kind == "wait":
            a_, b_ = parse_wait(x)
            if a_ is not None:
                while len(vm) > a_:
                    e = vm.popleft()
                    t = e["i"].tag
                    if t and t[0] == "dma":
                        key = (t[1], t[2]); dma_done[key] = dma_done.get(key, 0) + 1
                        if str(t[1]).startswith("p_") and dma_done[key] == dma_total[key]: dma_visible.add(key)
            if b_ is not None:
                if any(e["i"].kind == "smem" for e in lg) and b_ != 0 and len(lg) > b_:
                    pass
                if any(e["i"].kind == "smem" for e in lg):
                    if b_ == 0:
                        while lg: e = lg.popleft(); _rd_done(e, reads_pending, reads_done_nobar)
                else:
                    while len(lg) > b_:
                        e = lg.popleft(); _rd_done(e, reads_pending, reads_done_nobar)
        elif x.kind == "barrier":
            for key in list(dma_total):
                if dma_done.get(key, 0) == dma_total[key]: dma_visible.add(key)
            reads_done_nobar.clear()
        elif x.kind == "vmem":
            t = x.tag
            if t and t[0] == "dma":
                key = (t[1], t[2])
                if key in dma_visible: errs.append("DMA into %s after it was already visible: %s" % (key, x.text))
                al = set((alias or {}).get(t[1], ()))
                for (r, g), n in reads_pending.items():
                    if ((r == t[1] and g != t[2]) or r in al) and n > 0: errs.append("DMA %s while reads of %s gen %s pending: %s #%d" % (key, r, g, x.text, k))
                for (r, g) in reads_done_nobar:
                    if ((r == t[1] and g != t[2]) or r in al) and not str(r).startswith("p_"): errs.append("DMA %s w/o barrier after reads of %s gen %s: %s #%d" % (key, r, g, x.text, k))
                for (r, g), n in dma_total.items():
                    if r in al and dma_done.get((r, g), 0) < n: errs.append("DMA %s while older DMA into %s gen %s in flight: %s #%d" % (key, r, g, x.text, k))
                dma_total[key] = dma_total.get(key, 0) + 1
            vm.append({"i": x, "dst": only(x.wr, "vas")})
            if len(vm) > 63: errs.append("vmcnt overflow (>63) at #%d %s" % (k, x.text))
        elif x.kind in ("ds", "smem"):
            t = x.tag
            if t and t[0] == "rd":
                key = (t[1], t[2])
                if key not in dma_visible and not (len(t) > 3 and t[3] == "nochk"):
                    errs.append("ds_read of %s before DMA visible: %s #%d (done %s/%s)" % (key, x.text, k, dma_done.get(key), dma_total.get(key)))
                reads_pending[key] = reads_pending.get(key, 0) + 1
            lg.append({"i": x, "dst": only(x.wr, "vas")})
            if x.kind == "ds" and len(lg) > 15 + 0 and verbose: pass
    return errs

def _rd_done(e, reads_pending, reads_done_nobar):
    t = e["i"].tag
    if t and t[0] == "rd":
        key = (t[1], t[2]); reads_pending[key] -= 1; reads_done_nobar.add(key)

def make_trace(code, decisions=None, start=None, maxlen=2000000):
    decisions = {k: list(vv) for k, vv in (decisions or {}).items()}
    labels = {x.label: k for k, x in enumerate(code) if x.kind == "label"}
    pc = labels[start] if start else 0
    out = []
    while pc < len(code) and len(out) < maxlen:
        x = code[pc]; out.append(x)
        if x.kind == "end": break
        if x.kind == "branch":
            if x.op == "s_branch": pc = labels[x.target]; continue
            d = decisions.get(x.target)
            take = d.pop(0) if d else False
            if take: pc = labels[x.target]; continue
        pc += 1
    return out

def kernel_block(name, vgprs, accum, sgprs=102, wg_y=False):
    t = '.section .rodata,"a"\n.p2align 6\n.amdhsa_kernel %s\n' % name
    t += "  .amdhsa_next_free_vgpr %d\n  .amdhsa_next_free_sgpr %d\n  .amdhsa_accum_offset %d\n" % (vgprs, sgprs, accum)
    t += "  .amdhsa_group_segment_fixed_size 0\n  .amdhsa_kernarg_size 88\n  .amdhsa_user_sgpr_count 2\n"
    t += "  .amdhsa_user_sgpr_kernarg_segment_ptr 1\n  .amdhsa_system_sgpr_workgroup_id_x 1\n"
    if wg_y: t += "  .amdhsa_system_sgpr_workgroup_id_y 1\n"
    t += "  .amdhsa_float_denorm_mode_32 3\n"
    t += ".end_amdhsa_kernel\n.text\n"
    return t

def kernel_head(name):
    return ".globl %s\n.p2align 8\n.type %s,@function\n%s:\n" % (name, name, name)
```

```python
import sys
sys.path.insert(0, "k")
from common import *
from k0 import gen_k0
import k23
def gen(prof=False, opt=(), touch=1):
    hdr = "; LN -> fused (Q proj + FFN1 + flash attention + O proj + FFN2 + gate), gfx950\n"
    hdr += "; @launch kernel=ln_kernel grid=(256,1,1) block=(256,1,1) lds=0\n"
    hdr += "; @launch kernel=attn_kernel grid=(256,1,1) block=(256,1,1) lds=163840\n"
    hdr += '.amdgcn_target "amdgcn-amd-amdhsa--gfx950"\n.text\n'
    k = k23.K23(prof=prof, opt=opt)
    t = hdr + gen_k0(prof=prof, touch=touch) + k.gen()
    return t, k
if __name__ == "__main__":
    out = sys.argv[1]
    prof = "prof" in sys.argv
    opt = tuple(x[4:] for x in sys.argv if x.startswith("opt:"))
    touch = 2 if 'touch2' in opt else 0 if 'notouch' in opt else 1
    t, k = gen(prof, opt, touch)
    if prof: print("stamps", ",".join(k.prof.names))
    open(out, "w").write(t)
    ok = k23.check(k)
    print("wrote", out, len(t), "bytes", "CHECK OK" if ok else "CHECK ERRORS")
```
